```python
import torch

def _softmax(x, axis=-1):
    return torch.softmax(x, dim=axis)
def _gelu(x):
    return torch.nn.functional.gelu(x, approximate="tanh")
def _silu(x):
    return torch.nn.functional.silu(x)
def _sigmoid(x):
    return torch.sigmoid(x)
def _layernorm(x, axis=-1, eps=1e-5):
    m = x.mean(dim=axis, keepdim=True)
    v = x.var(dim=axis, keepdim=True, unbiased=False)
    return (x - m) / torch.sqrt(v + eps)
def _scatter_add(tgt, idx, src, axis=0):
    return tgt.clone().index_add_(axis, idx, src)
def _segment_sum(src, seg, n):
    out = torch.zeros((n,) + src.shape[1:], dtype=src.dtype)
    return out.index_add_(0, seg, src)
def _pad(x, pw):
    flat = tuple(v for pair in reversed(pw) for v in pair)
    return torch.nn.functional.pad(x, flat)

kernel_name = 'gated_mix__mha_block__sliding_local_dilated__prompt'

def setup_inputs():

    _w = (lambda a: (lambda t: t.to(torch.bfloat16) if t.is_floating_point() else t)(torch.as_tensor(a)))
    def _A_setup():
        B, S, D, H = 1, 2048, 1024, 32
        return {
            "x": _w((lambda *s: torch.randn(*s, dtype=torch.bfloat16) * 0.05)(B, S, D)),
            "wqkv": _w((lambda *s: torch.randn(*s, dtype=torch.bfloat16) * 0.8)(D, 3 * D)),
            "wo": _w((lambda *s: torch.randn(*s, dtype=torch.bfloat16) * 0.1)(D, D)),
        }
    _A_in = _A_setup()

    def _B_setup():
        B, S, D = 1, 2048, 1024
        return {
            "x": _w((lambda *s: torch.randn(*s, dtype=torch.bfloat16) * 0.05)(B, S, D)),
            "wqkv": _w((lambda *s: torch.randn(*s, dtype=torch.bfloat16) * 0.8)(D, 3 * D)),
            "wo": _w((lambda *s: torch.randn(*s, dtype=torch.bfloat16) * 0.05)(D, D)),
        }
    _B_in = _B_setup()

    return {
        "A_x": _A_in["x"],
        "A_wqkv": _A_in["wqkv"],
        "A_wo": _A_in["wo"],
        "B_x": _B_in["x"],
        "B_wqkv": _B_in["wqkv"],
        "B_wo": _B_in["wo"],
        "gate_w": _w((lambda *s: torch.randn(*s, dtype=torch.bfloat16) * 0.05)(1024) * 16.0),
    }

def reference(A_x, A_wqkv, A_wo, B_x, B_wqkv, B_wo, gate_w):
    def _A_ref(x, wqkv, wo):
        B, S, D = x.shape
        H = 32
        Dh = D // H
        qkv = (lambda x, *d: x.permute(*d))((x @ wqkv).reshape(B, S, 3, H, Dh), 2, 0, 3, 1, 4)
        q, k, v = qkv[0], qkv[1], qkv[2]
        scores = torch.einsum("bhqd,bhkd->bhqk", q, k) * (Dh ** -0.5)
        p = _softmax(scores, axis=-1)
        o = torch.einsum("bhqk,bhkd->bhqd", p, v)
        return (lambda x, *d: x.permute(*d))(o, 0, 2, 1, 3).reshape(B, S, D) @ wo

    def _B_ref(x, wqkv, wo):
        B, S, D = x.shape
        H = 32; Dh = D // H
        W, dil = 8, 2
        qkv = (lambda x, *d: x.permute(*d))((x @ wqkv).reshape(B, S, 3, H, Dh), 2, 0, 3, 1, 4)
        q, k, v = qkv[0], qkv[1], qkv[2]
        scale = Dh ** -0.5
        pos = torch.arange(S)
        off = torch.arange(W) * dil
        idx = pos[:, None] - off[None, :]
        mask = idx >= 0
        idx_c = torch.where(mask, idx, 0).reshape(-1)
        kg = k[:, :, idx_c, :].reshape(B, H, S, W, Dh)
        vg = v[:, :, idx_c, :].reshape(B, H, S, W, Dh)
        logits = torch.einsum("bhsd,bhswd->bhsw", q, kg) * scale
        logits = torch.where(mask[None, None, :, :], logits, -1e9)
        attn = _softmax(logits, axis=-1)
        o = torch.einsum("bhsw,bhswd->bhsd", attn, vg)
        return (lambda x, *d: x.permute(*d))(o, 0, 2, 1, 3).reshape(B, S, D) @ wo

    x = A_x
    g = _sigmoid((x * gate_w).sum(-1, keepdims=True))
    a = _A_ref(x, A_wqkv, A_wo)
    b = _B_ref(x, B_wqkv, B_wo)
    return g * a + (1 - g) * b
```

```python
import re

class Asm:
    def __init__(self):
        self.lines = []
    def __call__(self, s):
        for l in s.split('\n'):
            l = l.strip()
            if l: self.lines.append(l)
    def label(self, n): self.lines.append(n + ':')
    def c(self, s): self.lines.append('; ' + s)
    def text(self): return '\n'.join(('' if l.endswith(':') else '    ') + l for l in self.lines) + '\n'

def vr(base, n=1):
    return f"v{base}" if n == 1 else f"v[{base}:{base+n-1}]"
def sr(base, n=1):
    return f"s{base}" if n == 1 else f"s[{base}:{base+n-1}]"

_reg = re.compile(r'^(-|\|)?(abs\()?([vsa])(\d+|\[(\d+):(\d+)\])\)?\|?$')
def regs_of(op):
    op = op.strip()
    if op in ('vcc',): return {('s','vcc')}
    if op in ('vcc_lo','vcc_hi'): return {('s','vcc')}
    if op == 'exec': return {('s','exec')}
    if op == 'm0': return {('s','m0')}
    m = _reg.match(op)
    if not m: return set()
    k = m.group(3)
    if m.group(5) is not None:
        return {(k, i) for i in range(int(m.group(5)), int(m.group(6))+1)}
    return {(k, int(m.group(4)))}

TRANS = ('v_exp_f32','v_log_f32','v_rcp_f32','v_rsq_f32','v_sqrt_f32','v_sin_f32','v_cos_f32','v_exp_f16','v_rcp_iflag_f32')
class Ins:
    def __init__(self, line):
        self.line = line
        s = line.split(';')[0].strip()
        parts = s.split(None, 1)
        self.op = parts[0]
        rest = parts[1] if len(parts) > 1 else ''
        ops = [o.strip() for o in rest.split(',')] if rest else []
        mods = ''
        if ops:
            last = ops[-1].split(None, 1)
            ops[-1] = last[0]
            if len(last) > 1: mods = last[1]
        self.ops = ops; self.mods = mods
        op = self.op
        self.ws = 1
        self.cls = 'other'
        self.w = set(); self.r = set()
        self.A = self.B = self.C = set(); self.passes = 0
        R = [regs_of(o) for o in ops]
        if op == 's_nop':
            self.ws = int(ops[0], 0) + 1; self.cls = 'nop'
        elif op.startswith('v_mfma') or op.startswith('v_smfmac'):
            self.cls = 'mfma'
            self.passes = 8 if '32x32' in op else 4
            self.w = R[0]; self.A = R[1]; self.B = R[2]
            if op.startswith('v_smfmac'):
                self.C = R[0]; self.B = R[2] | R[3]
            else:
                self.C = R[3]
            self.r = self.A | self.B | self.C
        elif op.startswith('v_'):
            self.cls = 'valu'
            self.trans = op.replace('_e32','').replace('_e64','') in TRANS
            if op.startswith('v_cmp'):
                self.w = R[0]; self.r = set().union(*R[1:]) if len(R) > 1 else set()
            elif op.startswith('v_readfirstlane') or op.startswith('v_readlane'):
                self.w = R[0]; self.r = set().union(*R[1:])
            elif op.startswith('v_permlane32_swap') or op.startswith('v_permlane16_swap'):
                self.w = R[0] | R[1]; self.r = R[0] | R[1]
            elif op.startswith('v_add_co') or op.startswith('v_sub_co') or op.startswith('v_addc_co') or op.startswith('v_subb_co'):
                self.w = R[0] | R[1]; self.r = set().union(*R[2:])
            else:
                self.w = R[0]; self.r = set().union(*R[1:]) if len(R) > 1 else set()
                if op.startswith('v_fmac') or op.startswith('v_dot2c') or op.startswith('v_writelane') or 'UNUSED_PRESERVE' in mods or op.startswith('v_pk_fmac'):
                    self.r = self.r | R[0]
                if op.startswith('v_cndmask') and len(ops) == 3: self.r = self.r | {('s','vcc')}
        elif op.startswith('buffer_') or op.startswith('global_'):
            self.cls = 'vmem'
            allr = set().union(*R) if R else set()
            isload = '_load' in op
            self.lds = ('lds' in mods.split()) or ('_lds_' in op)
            if op.startswith('buffer_inv') or op.startswith('buffer_wbl2'):
                pass
            elif isload and not self.lds:
                self.w = R[0]; self.r = set().union(*R[1:])
            elif 'atomic' in op and 'sc0' in mods.split():
                self.w = R[0]; self.r = allr
            else:
                self.r = allr
            self.wide_store = ('store' in op and ('x4' in op or 'x3' in op))
            if self.wide_store:
                self.data = R[0] if op.startswith('buffer_') else R[1]
        elif op.startswith('ds_'):
            self.cls = 'ds'
            if op.startswith('ds_read') or op.startswith('ds_bpermute') or op.startswith('ds_swizzle') or op.startswith('ds_permute'):
                self.w = R[0]; self.r = set().union(*R[1:])
            else:
                self.r = set().union(*R)
        elif op.startswith('s_'):
            self.cls = 'salu'
            if op.startswith('s_cmp') or op.startswith('s_cbranch') or op.startswith('s_branch') or op in ('s_barrier','s_waitcnt','s_endpgm','s_sleep','s_setprio'):
                self.r = set().union(*R) if R else set()
            else:
                self.w = R[0] if R else set(); self.r = set().union(*R[1:]) if len(R) > 1 else set()
                if 'saveexec' in op: self.w = self.w | {('s','exec')}

def vg(s): return {x for x in s if x[0] in 'va'}
def sg(s): return {x for x in s if x[0] == 's'}

def need(p, c):
    n = 0; why = ''
    def up(k, w):
        nonlocal n, why
        if k > n: n = k; why = w
    if p.cls == 'valu':
        pw = vg(p.w)
        if c.cls == 'mfma' and (pw & c.r): up(2, 'valu->mfma')
        if c.cls == 'valu':
            if c.op.startswith('v_permlane') and (pw & c.r): up(2, 'valu->permlane')
            if (c.op.startswith('v_readfirstlane') or c.op.startswith('v_readlane')) and (pw & c.r): up(1, 'valu->readlane')
            if 'dpp' in c.op or 'row_' in c.mods or 'quad_perm' in c.mods:
                if pw & c.r: up(2, 'valu->dpp')
            if getattr(p, 'trans', False) and not getattr(c, 'trans', False) and (pw & c.r): up(1, 'trans->valu')
            if ('sdwa' in p.op and 'dst_sel:DWORD' not in p.mods) and (pw & (c.r | c.w)): up(1, 'sdwa->valu')
        if getattr(p, 'trans', False) and c.cls in ('mfma',) and (pw & c.r): up(2, 'trans->mfma')
        ps = sg(p.w)
        if ps:
            if c.cls == 'valu' and (ps & c.r): up(2, 'valu sgpr->valu const')
            if c.cls == 'vmem' and (ps & c.r): up(5, 'valu sgpr->vmem')
            if c.cls == 'salu' and (ps & c.r): up(1, 'valu sgpr->salu (pad)')
            if c.cls == 'valu' and (c.op.startswith('v_readlane') or c.op.startswith('v_writelane')) and (ps & c.r): up(4, 'valu sgpr->lanesel')
    if p.cls == 'mfma':
        P = p.passes
        D = p.w
        if c.cls == 'valu' and (D & (c.r | c.w)): up({4:8, 8:12}[P], 'mfma->valu')
        if c.cls in ('vmem', 'ds') and (D & (c.r | c.w)): up({4:8, 8:12}[P], 'mfma->mem')
        if c.cls == 'mfma':
            if D & (c.A | c.B): up({4:8, 8:12}[P], 'mfma->mfma AB')
            if D & c.C:
                if not (D == c.C and p.passes == c.passes): up({4:6, 8:10}[P], 'mfma->mfma C overlap')
            if (D & c.w) and not (D & c.C):
                up({4:6, 8:10}[P], 'mfma->mfma WAW')
        if c.cls == 'valu' and (p.C & c.w): up({4:3, 8:7}[P], 'mfma C WAR')
    if p.cls == 'salu' and ('s','m0') in p.w:
        if c.cls == 'vmem' and getattr(c, 'lds', False): up(1, 'm0->ldsdma')
    if p.cls == 'vmem' and getattr(p, 'wide_store', False):
        if c.cls == 'valu' and (p.data & c.w): up(2, 'store data WAR')
        if c.cls in ('ds','vmem') and (p.data & c.w): up(1, 'store data WAR(mem)')
    return n, why

def check(lines, window=24, verbose=True):
    ins = []; labels = {}
    for l in lines:
        s = l.split(';')[0].strip()
        if not s: continue
        if s.endswith(':'):
            labels[s[:-1]] = len(ins); continue
        if s.startswith('.'): continue
        ins.append(Ins(s))
    errs = []
    def scan(seq, tag):
        for a in range(len(seq)):
            p = ins[seq[a]]
            if p.cls not in ('valu','mfma','salu','vmem'): continue
            d = 0
            for b in range(a+1, min(len(seq), a+1+window)):
                c = ins[seq[b]]
                n, why = need(p, c)
                if n > d:
                    errs.append(f"{tag}: need {n} have {d} [{why}]: '{p.line}' -> '{c.line}'")
                d += c.ws
                if d >= 13: break
    seq = []
    for i, x in enumerate(ins):
        seq.append(i)
        if x.op in ('s_branch', 's_endpgm'):
            scan(seq, 'lin'); seq = []
    if seq: scan(seq, 'lin')
    for i, x in enumerate(ins):
        if x.op.startswith('s_cbranch') or x.op == 's_branch':
            t = labels.get(x.ops[0])
            if t is None: continue
            pre = list(range(max(0, i-window), i+1))
            post = list(range(t, min(len(ins), t+window)))
            for a in pre:
                p = ins[a]
                if p.cls not in ('valu','mfma','salu','vmem'): continue
                d = sum(ins[k].ws for k in range(a+1, i+1))
                for b in post:
                    if d >= 13: break
                    c = ins[b]
                    n, why = need(p, c)
                    if n > d: errs.append(f"branch->{x.ops[0]}: need {n} have {d} [{why}]: '{p.line}' -> '{c.line}'")
                    d += c.ws
                    if c.op in ('s_branch','s_endpgm'): break
    errs = list(dict.fromkeys(errs))
    if verbose:
        for e in errs[:40]: print("HAZARD", e)
    return errs
```

```python
from asmlib import *
import math

NAME = 'gated_mix__mha_block__sliding_local_dilated__prompt'
KA_X, KA_WQA, KA_WOA, KA_BX, KA_WQB, KA_WOB, KA_GW, KA_OUT, KA_DBG, KA_WS = [8*i for i in range(10)]
WS_Q  = 0
WS_KV = 8 << 20
WS_G  = 24 << 20
WS_O  = 32 << 20
WS_SIZE = 268435456
QSCALE = (32 ** -0.5) * math.log2(math.e)

def f2u(x):
    import struct
    return struct.unpack('<I', struct.pack('<f', x))[0]

WS_T = 48 << 20
STAMPS = False
S_ST = 64
def stamp(a, i):
    if not STAMPS: return
    a(f"s_memtime s[96:97]")
    a(f"s_memrealtime s[98:99]")
    a("s_waitcnt lgkmcnt(0)")
    a(f"s_mov_b32 s{S_ST+2*i}, s96")
    a(f"s_mov_b32 s{S_ST+2*i+1}, s98")
def stamp_flush(a, n, srd_ws, vt, wave_sgpr, tag):
    if not STAMPS: return
    a(f"s_cmp_lg_u32 s{wave_sgpr}, 0")
    a(f"s_cbranch_scc1 L_st_skip_{tag}")
    a(f"s_lshl_b32 s96, s2, 7")
    a(f"s_add_u32 s96, s96, 0x{WS_T:x}")
    a(f"v_mov_b32 v{vt+1}, 0")
    for i in range(2*n):
        a(f"v_mov_b32 v{vt}, s{S_ST+i}")
        a(f"buffer_store_dword v{vt}, v{vt+1}, s[{srd_ws}:{srd_ws+3}], s96 offen offset:{4*i}")
    a.label(f"L_st_skip_{tag}")

def srd(a, s, ptr_lo, size, add=None):
    if add:
        a(f"s_add_u32 s{s}, s{ptr_lo}, 0x{add:x}")
        a(f"s_addc_u32 s{s+1}, s{ptr_lo+1}, 0")
    else:
        a(f"s_mov_b32 s{s}, s{ptr_lo}")
        a(f"s_mov_b32 s{s+1}, s{ptr_lo+1}")
    a(f"s_mov_b32 s{s+2}, 0x{size:x}")
    a(f"s_mov_b32 s{s+3}, 0x20000")

L_X = [0, 32768]
L_W = [65536, 65536 + 24576]
L_GW = 65536 + 49152
G1_LDS = L_GW + 2048

class G1:
    ACC = 0
    XF = 96
    WF = 112
    GF = 136
    GACC = 144
    XA = 145
    WA = 153
    GA = 154
    XD = 155
    WD = 159
    T0 = 162
    LANE = 170
    NV = 176

S_X, S_W, S_WS, S_GW = 4, 8, 12, 16
S_H, S_TB, S_WV, S_KX, S_KW, S_CNT, S_M0X, S_M0W, S_BR = 20, 21, 22, 23, 24, 25, 26, 27, 28

def acc(f, b): return G1.ACC + (f*3+b)*16
def xf(buf, f): return G1.XF + (buf*2+f)*4
def wf(buf, b): return G1.WF + (buf*3+b)*4
def gf(buf): return G1.GF + buf*4

def g1_reads(a, stage, s, buf):
    r = []
    for f in range(2):
        r.append(f"ds_read_b128 {vr(xf(buf,f),4)}, v{G1.XA+f*4+s} offset:{L_X[stage]}")
    for b in range(3):
        for tt in range(2):
            r.append(f"ds_read_b64_tr_b16 {vr(wf(buf,b)+2*tt,2)}, v{G1.WA} offset:{stage*24576 + s*3072 + b*1024 + tt*256}")
    return r

def g1_gate_read(kstep_sym, s, buf):
    return f"ds_read_b128 {vr(gf(buf),4)}, v{G1.GA} offset:{s*32}"

def g1_mfmas(buf):
    m = []
    for f in range(2):
        for b in range(3):
            A, B = (wf(buf,b), xf(buf,f)) if b < 2 else (xf(buf,f), wf(buf,b))
            m.append(f"v_mfma_f32_32x32x16_bf16 {vr(acc(f,b),16)}, {vr(A,4)}, {vr(B,4)}, {vr(acc(f,b),16)}")
    return m

def g1_dots(buf):
    return [f"v_dot2_f32_bf16 v{G1.GACC}, v{xf(buf,0)+i}, v{gf(buf)+i}, v{G1.GACC}" for i in range(4)]

def g1_dma(stage):
    d = []
    d.append(f"s_add_u32 m0, s{S_M0X}, {L_X[stage]}\ns_nop 0")
    for j in range(4):
        d.append(f"buffer_load_dwordx4 v{G1.XD+j}, s[{S_X}:{S_X+3}], s{S_KX} offen offset:{j*1024} lds")
    d.append(f"s_add_u32 m0, s{S_M0W}, {stage*24576}\ns_nop 0")
    for b in range(3):
        d.append(f"buffer_load_dwordx4 v{G1.WD+b}, s[{S_W}:{S_W+3}], s{S_KW} offen offset:{b*1024} lds")
    return d

def interleave(main, fill):
    out = []; n = len(main); k = 0
    for i, m in enumerate(main):
        out.append(m)
        upto = (len(fill) * (i+1) + n - 1) // n
        while k < upto and k < len(fill):
            out.append(fill[k]); k += 1
    return out

def g1_step(a, stage, dma_next, last):
    for s in range(4):
        buf = s % 2
        if s < 3:
            a("s_waitcnt lgkmcnt(0)")
            fill = g1_reads(a, stage, s+1, buf^1) + [g1_gate_read(None, s+1, buf^1)]
            main = g1_mfmas(buf)
            dots = g1_dots(buf)
            seq = interleave(main, fill)
            for x in seq: a(x)
            for x in dots: a(x)
        else:
            a("s_waitcnt lgkmcnt(0)")
            if not last:
                a("s_waitcnt vmcnt(0)")
                a("s_barrier")
                a(f"v_add_u32 v{G1.GA}, 128, v{G1.GA}")
                fill = g1_reads(a, stage^1, 0, buf^1) + [g1_gate_read(None, 0, buf^1)]
                if dma_next:
                    fill = fill + g1_dma(stage) + [f"s_add_u32 s{S_KX}, s{S_KX}, 128", f"s_add_u32 s{S_KW}, s{S_KW}, {64*6144}"]
            else:
                fill = []
            main = g1_mfmas(buf)
            seq = interleave(main, fill)
            for x in seq: a(x)
            for x in g1_dots(buf): a(x)

def gen_gemm1(a, kname):
    G = G1
    a.label(kname)
    a("s_cmp_ge_u32 s2, 256")
    a("s_cbranch_scc1 L_g1_end")
    stamp(a, 0)
    a(f"s_load_dwordx2 s[30:31], s[0:1], {KA_X}")
    a(f"s_load_dwordx2 s[32:33], s[0:1], {KA_WQA}")
    a(f"s_load_dwordx2 s[34:35], s[0:1], {KA_WQB}")
    a(f"s_load_dwordx2 s[36:37], s[0:1], {KA_GW}")
    a(f"s_load_dwordx2 s[38:39], s[0:1], {KA_WS}")
    a(f"s_and_b32 s40, s2, 7")
    a(f"s_lshr_b32 s41, s2, 3")
    a(f"s_and_b32 s42, s41, 3")
    a(f"s_lshl_b32 s40, s40, 2")
    a(f"s_add_u32 s{S_H}, s40, s42")
    a(f"s_lshr_b32 s{S_TB}, s41, 2")
    a(f"v_lshrrev_b32 v{G.T0}, 6, v0")
    a(f"v_and_b32 v0, 63, v0")
    a(f"v_mov_b32 v{G.LANE}, v0")
    a(f"v_readfirstlane_b32 s{S_WV}, v{G.T0}")
    a("s_nop 1")
    a(f"s_lshr_b32 s{S_BR}, s{S_WV}, 2")
    a(f"s_and_b32 s43, s{S_WV}, 3")
    T = G.T0
    a(f"v_lshrrev_b32 v{T}, 3, v0")
    a(f"s_lshl_b32 s44, s43, 5")
    a(f"v_add_u32 v{T}, s44, v{T}")
    a(f"v_lshlrev_b32 v{T}, 1, v{T}")
    a(f"s_lshl_b32 s44, s{S_TB}, 8")
    a(f"s_add_u32 s44, s44, s{S_BR}")
    a(f"v_add_u32 v{T}, s44, v{T}")
    a(f"v_lshlrev_b32 v{T}, 11, v{T}")
    a(f"v_and_b32 v{T+1}, 7, v0")
    a(f"v_lshrrev_b32 v{T+2}, 4, v0")
    a(f"v_xor_b32 v{T+1}, v{T+1}, v{T+2}")
    a(f"v_xor_b32 v{T+2}, 4, v{T+1}")
    a(f"v_lshlrev_b32 v{T+1}, 4, v{T+1}")
    a(f"v_lshlrev_b32 v{T+2}, 4, v{T+2}")
    for j in range(4):
        src = T+1 if j % 2 == 0 else T+2
        a(f"v_add_u32 v{G.XD+j}, v{T}, v{src}")
        if j: a(f"v_add_u32 v{G.XD+j}, {j*(16*2048 - 1024)}, v{G.XD+j}")
    a(f"s_lshl_b32 s{S_M0X}, s{S_WV}, 12")
    a(f"v_lshrrev_b32 v{T}, 2, v0")
    a(f"s_lshl_b32 s44, s43, 4")
    a(f"v_add_u32 v{T}, s44, v{T}")
    a(f"s_movk_i32 s44, 6144")
    a(f"v_mul_lo_u32 v{T}, v{T}, s44")
    a(f"v_and_b32 v{T+1}, 3, v0")
    a(f"v_lshlrev_b32 v{T+1}, 4, v{T+1}")
    a(f"s_lshl_b32 s44, s{S_H}, 6")
    a(f"v_add3_u32 v{G.WD}, v{T}, v{T+1}, s44")
    a(f"v_add_u32 v{G.WD+1}, 1024, v{G.WD}")
    a(f"v_add_u32 v{G.WD+2}, 2048, v{G.WD}")
    a(f"s_mul_i32 s44, s{S_BR}, 12288")
    a(f"s_mul_i32 s45, s43, 3072")
    a(f"s_add_u32 s{S_M0W}, s44, s45")
    a(f"s_add_u32 s{S_M0W}, s{S_M0W}, {L_W[0]}")
    a(f"v_and_b32 v{T}, 31, v0")
    a(f"v_lshrrev_b32 v{T+1}, 5, v0")
    a(f"v_lshrrev_b32 v{T+2}, 1, v{T}")
    a(f"v_and_b32 v{T+2}, 7, v{T+2}")
    a(f"v_xor_b32 v{T+1}, v{T+1}, v{T+2}")
    a(f"v_lshlrev_b32 v{T+1}, 4, v{T+1}")
    a(f"v_lshlrev_b32 v{T}, 7, v{T}")
    a(f"v_add_u32 v{T}, v{T}, v{T+1}")
    a(f"s_lshl_b32 s44, s43, 13")
    a(f"v_add_u32 v{T}, s44, v{T}")
    a(f"s_lshl_b32 s44, s{S_BR}, 12")
    a(f"s_xor_b32 s45, s44, 4096")
    for s in range(4):
        a(f"v_xor_b32 v{T+1}, {32*s}, v{T}")
        a(f"v_add_u32 v{G.XA+s}, s44, v{T+1}")
        a(f"v_add_u32 v{G.XA+4+s}, s45, v{T+1}")
    a(f"v_lshrrev_b32 v{T}, 5, v0")
    a(f"v_lshlrev_b32 v{T}, 9, v{T}")
    a(f"v_bfe_u32 v{T+1}, v0, 2, 2")
    a(f"v_lshlrev_b32 v{T+1}, 6, v{T+1}")
    a(f"v_bfe_u32 v{T+2}, v0, 4, 1")
    a(f"v_lshlrev_b32 v{T+2}, 5, v{T+2}")
    a(f"v_add3_u32 v{T}, v{T}, v{T+1}, v{T+2}")
    a(f"v_and_b32 v{T+1}, 3, v0")
    a(f"v_lshlrev_b32 v{T+1}, 3, v{T+1}")
    a(f"s_mul_i32 s44, s{S_BR}, 12288")
    a(f"s_add_u32 s44, s44, {L_W[0]}")
    a(f"v_add3_u32 v{G.WA}, v{T}, v{T+1}, s44")
    a(f"v_lshrrev_b32 v{T}, 5, v0")
    a(f"v_lshlrev_b32 v{T}, 4, v{T}")
    a(f"v_add_u32 v{G.GA}, {L_GW}, v{T}")
    a("s_waitcnt lgkmcnt(0)")
    srd(a, S_X, 30, 2048*2048)
    a(f"s_cmp_eq_u32 s{S_BR}, 0")
    a(f"s_cselect_b32 s{S_W}, s32, s34")
    a(f"s_cselect_b32 s{S_W+1}, s33, s35")
    a(f"s_mov_b32 s{S_W+2}, 0x{1024*6144:x}")
    a(f"s_mov_b32 s{S_W+3}, 0x20000")
    srd(a, S_GW, 36, 2048)
    srd(a, S_WS, 38, WS_SIZE)
    a(f"s_cmp_ge_u32 s{S_WV}, 2")
    a("s_cbranch_scc1 L_g1_nogate")
    a(f"v_lshlrev_b32 v{T}, 4, v0")
    a(f"s_lshl_b32 s44, s{S_WV}, 10")
    a(f"s_add_u32 m0, s44, {L_GW}")
    a("s_nop 0")
    a(f"buffer_load_dwordx4 v{T}, s[{S_GW}:{S_GW+3}], s44 offen lds")
    a.label("L_g1_nogate")
    a(f"s_mov_b32 s{S_KX}, 0")
    a(f"s_mov_b32 s{S_KW}, 0")
    for x in g1_dma(0): a(x)
    a(f"s_mov_b32 s{S_KX}, 128")
    a(f"s_mov_b32 s{S_KW}, {64*6144}")
    for x in g1_dma(1): a(x)
    a(f"s_mov_b32 s{S_KX}, 256")
    a(f"s_mov_b32 s{S_KW}, {2*64*6144}")
    for r in range(96): a(f"v_mov_b32 v{G.ACC+r}, 0")
    a(f"v_mov_b32 v{G.GACC}, 0")
    stamp(a, 1)
    a("s_waitcnt vmcnt(7)")
    a("s_barrier")
    stamp(a, 2)
    for x in g1_reads(a, 0, 0, 0) + [g1_gate_read(None, 0, 0)]: a(x)
    a(f"s_mov_b32 s{S_CNT}, 7")
    a.label("L_g1_loop")
    g1_step(a, 0, True, False)
    g1_step(a, 1, True, False)
    a(f"s_sub_u32 s{S_CNT}, s{S_CNT}, 1")
    a(f"s_cmp_lg_u32 s{S_CNT}, 0")
    a("s_cbranch_scc1 L_g1_loop")
    g1_step(a, 0, False, False)
    g1_step(a, 1, False, True)
    stamp(a, 3)

def g1_pack(a, f, b, dst, scale=False):
    base = acc(f, b)
    for m in range(8):
        if scale:
            a(f"v_mul_f32 v{base+2*m}, s46, v{base+2*m}")
            a(f"v_mul_f32 v{base+2*m+1}, s46, v{base+2*m+1}")
        a(f"v_cvt_pk_bf16_f32 v{dst+m}, v{base+2*m}, v{base+2*m+1}")

def gen_gemm1_epilogue_unfused(a):
    G = G1; T = G.T0
    a("s_nop 7")
    a("s_nop 3")
    a(f"s_mov_b32 s46, 0x{f2u(QSCALE):x}")
    a(f"v_lshlrev_b32 v{T}, 4, v{G.LANE}")
    a(f"v_and_b32 v{T+6}, 0x33, v{G.LANE}")
    a(f"v_lshrrev_b32 v{T+7}, 1, v{G.LANE}")
    a(f"v_and_b32 v{T+7}, 4, v{T+7}")
    a(f"v_or_b32 v{T+6}, v{T+6}, v{T+7}")
    a(f"v_lshlrev_b32 v{T+7}, 1, v{G.LANE}")
    a(f"v_and_b32 v{T+7}, 8, v{T+7}")
    a(f"v_or_b32 v{T+6}, v{T+6}, v{T+7}")
    a(f"v_lshlrev_b32 v{T+6}, 4, v{T+6}")
    a(f"s_lshl_b32 s44, s{S_BR}, 5")
    a(f"s_add_u32 s44, s44, s{S_H}")
    a(f"s_lshl_b32 s44, s44, 6")
    a(f"s_lshl_b32 s45, s{S_TB}, 3")
    a(f"s_add_u32 s44, s44, s45")
    a(f"s_lshl_b32 s45, s43, 1")
    a(f"s_add_u32 s44, s44, s45")
    P = G.XF
    for f in range(2):
        a(f"s_xor_b32 s45, s{S_BR}, {f}")
        a(f"s_add_u32 s45, s44, s45")
        a(f"s_lshl_b32 s47, s45, 11")
        a(f"s_lshl_b32 s48, s45, 12")
        a(f"s_add_u32 s48, s48, 0x{WS_KV:x}")
        for b in range(3):
            dst = P + (b % 2) * 8 + (f % 2) * 16
            g1_pack(a, f, b, dst, scale=(b == 0))
            for ks in range(2):
                if b == 0:
                    a(f"buffer_store_dwordx4 {vr(dst+4*ks,4)}, v{T}, s[{S_WS}:{S_WS+3}], s47 offen offset:{ks*1024}")
                else:
                    a(f"buffer_store_dwordx4 {vr(dst+4*ks,4)}, v{T if b == 2 else T+6}, s[{S_WS}:{S_WS+3}], s48 offen offset:{(b-1)*2048 + ks*1024}")
            a("s_nop 1")
    a(f"v_mov_b32 v{T+1}, v{G.GACC}")
    a("s_nop 1")
    a(f"v_permlane32_swap_b32 v{G.GACC}, v{T+1}")
    a("s_nop 1")
    a(f"v_add_f32 v{T+1}, v{G.GACC}, v{T+1}")
    a(f"v_mul_f32 v{T+1}, 0x{f2u(-math.log2(math.e)):x}, v{T+1}")
    a(f"v_exp_f32 v{T+1}, v{T+1}")
    a("s_nop 0")
    a(f"v_add_f32 v{T+1}, 1.0, v{T+1}")
    a(f"v_rcp_f32 v{T+1}, v{T+1}")
    if STAMPS:
        stamp(a, 4)
        a("s_waitcnt vmcnt(0)")
        stamp(a, 5)
        stamp_flush(a, 6, S_WS, T+4, S_WV, 'g1')
    a(f"s_cmp_lg_u32 s{S_H}, 0")
    a("s_cbranch_scc1 L_g1_end")
    a(f"s_lshl_b32 s44, s{S_TB}, 3")
    a(f"s_lshl_b32 s45, s43, 1")
    a(f"s_add_u32 s44, s44, s45")
    a(f"s_add_u32 s44, s44, s{S_BR}")
    a(f"s_lshl_b32 s44, s44, 8")
    a(f"s_add_u32 s44, s44, 0x{WS_G:x}")
    a(f"v_lshlrev_b32 v{T}, 2, v{G.LANE}")
    a(f"buffer_store_dword v{T+1}, v{T}, s[{S_WS}:{S_WS+3}], s44 offen")
    a.label("L_g1_end")
    a("s_endpgm")

def kd(name, vgpr, sgpr=102):
    return f'''.amdhsa_kernel {name}
  .amdhsa_next_free_vgpr {vgpr}
  .amdhsa_next_free_sgpr {sgpr}
  .amdhsa_accum_offset {(vgpr+3)//4*4}
  .amdhsa_group_segment_fixed_size 0
  .amdhsa_kernarg_size 80
  .amdhsa_user_sgpr_count 2
  .amdhsa_user_sgpr_kernarg_segment_ptr 1
  .amdhsa_system_sgpr_workgroup_id_x 1
  .amdhsa_float_denorm_mode_32 3
.end_amdhsa_kernel
'''

def build_file(kernels):
    out = []
    if len(kernels) == 1:
        n, a, g, b, l, v = kernels[0]
        out.append(f"; @launch grid=({g},1,1) block=({b},1,1) lds={l}")
    else:
        for n, a, g, b, l, v in kernels:
            out.append(f"; @launch kernel={n} grid=({g},1,1) block=({b},1,1) lds={l}")
    out.append('.amdgcn_target "amdgcn-amd-amdhsa--gfx950"')
    out.append('.text')
    for n, a, g, b, l, v in kernels:
        out.append(f".globl {n}")
        out.append(".p2align 8")
        out.append(f".type {n},@function")
        out.append(a.text())
    out.append('.section .rodata,"a"')
    for n, a, g, b, l, v in kernels:
        out.append(".p2align 6")
        out.append(kd(n, v))
    return "\n".join(out)
```

```python
from gen1 import *

NRING = 4
K2_LDS = NRING * 32768
FORCE_FALLBACK = False

class K2:
    QA = 8; QB = 16
    OA = 24; OB = 40
    LA = 56; LB = 60
    NMA = 64; NMB = 80
    SA = [96, 112]; SB = [128, 144]
    UK = [160, 176]; UV = [168, 184]
    SEL = 192; IDX = 196
    A0 = 197; A1 = 198; DM = 199; G = 200; L16 = 201; LB16 = 202
    T = 204
    NV = 220

S2_WS = 4
S2_H, S2_TB, S2_WV, S2_BR, S2_TG = 20, 21, 22, 23, 24
S2_TA, S2_TBT = 25, 26
S2_BLK, S2_M0, S2_RING, S2_CNT, S2_RN = 27, 28, 29, 30, 31
S2_N = 32

def m32(D, A, B, C):
    c = vr(C, 16) if isinstance(C, int) and C >= 0 else '0'
    return f"v_mfma_f32_32x32x16_bf16 {vr(D,16)}, {vr(A,4)}, {vr(B,4)}, {c}"
def sm32(D, A, B): return f"v_smfmac_f32_32x32x32_bf16 {vr(D,16)}, {vr(A,4)}, {vr(B,8)}, v{K2.IDX}"
def sm16(D, B): return f"v_smfmac_f32_16x16x64_bf16 {vr(D,4)}, {vr(K2.SEL,4)}, {vr(B,8)}, v{K2.IDX}"

def ids(a, T):
    a(f"s_and_b32 s40, s2, 7")
    a(f"s_lshr_b32 s41, s2, 3")
    a(f"s_and_b32 s42, s41, 3")
    a(f"s_lshl_b32 s40, s40, 2")
    a(f"s_add_u32 s{S2_H}, s40, s42")
    a(f"s_lshr_b32 s{S2_TB}, s41, 2")
    a(f"v_lshrrev_b32 v{T}, 6, v0")
    a(f"v_and_b32 v0, 63, v0")
    a(f"s_nop 0")
    a(f"v_readfirstlane_b32 s{S2_WV}, v{T}")
    a("s_nop 1")
    a(f"s_lshr_b32 s{S2_BR}, s{S2_WV}, 2")
    a(f"s_and_b32 s{S2_TG}, s{S2_WV}, 3")

def max_chain(a, dst, regs):
    regs = list(regs)
    a(f"v_max3_f32 v{dst}, v{regs[0]}, v{regs[1]}, v{regs[2]}")
    k = 3
    while k < len(regs):
        if k + 1 < len(regs):
            a(f"v_max3_f32 v{dst}, v{dst}, v{regs[k]}, v{regs[k+1]}"); k += 2
        else:
            a(f"v_max_f32 v{dst}, v{dst}, v{regs[k]}"); k += 1

def cross_half(a, op, dst, tmp):
    a(f"v_mov_b32 v{tmp}, v{dst}")
    a("s_nop 1")
    a(f"v_permlane32_swap_b32 v{dst}, v{tmp}")
    a("s_nop 1")
    a(f"{op} v{dst}, v{dst}, v{tmp}")

def consts(a):
    R = K2; T = R.T
    a(f"v_lshlrev_b32 v{R.L16}, 4, v0")
    a(f"v_mov_b32 v{R.IDX}, 0xdddddddd")
    a(f"v_bfe_u32 v{T}, v0, 2, 1")
    a(f"v_mov_b32 v{T+1}, 0x3f803f80")
    a(f"v_mul_lo_u32 v{R.SEL+2}, v{T}, v{T+1}")
    a(f"v_sub_u32 v{R.SEL}, v{T+1}, v{R.SEL+2}")
    a(f"v_mov_b32 v{R.SEL+3}, v{R.SEL+2}")
    a(f"v_mov_b32 v{R.SEL+1}, v{R.SEL}")

def finish_store(a, O, scale, P, soff, voff, srd, sc1=False):
    for r in range(16):
        a(f"v_mul_f32 v{O+r}, v{scale}, v{O+r}")
    for m in range(8):
        a(f"v_cvt_pk_bf16_f32 v{P+m}, v{O+2*m}, v{O+2*m+1}")
    for ks in range(2):
        a(f"buffer_store_dwordx4 {vr(P+4*ks,4)}, v{voff}, s[{srd}:{srd+3}], s{soff} offen offset:{ks*1024}" + (" sc1" if sc1 else ""))

class BR:
    Q = 160; KS = 168; VS = 176; KP = 184; VP = 208
    MS = 64; MP = 80
    SS = 96; SP = 112
    O = 24; L = 56
    G = 212

def battn_masks(a, noprev_sgpr_cond):
    R = K2; T = R.T; B = BR
    a(f"v_and_b32 v{T}, 31, v0")
    a(f"v_lshrrev_b32 v{T+1}, 5, v0")
    a(f"v_lshlrev_b32 v{T+1}, 3, v{T+1}")
    a(f"v_sub_u32 v{T}, v{T}, v{T+1}")
    a(f"v_mov_b32 v{T+1}, 0xff800000")
    noprev_sgpr_cond(a)
    a(f"s_lshl_b32 s44, s44, 10")
    a(f"v_add_u32 v{T+2}, s44, v{T}")
    for g0 in range(0, 16, 4):
        for r in range(g0, g0+4):
            c = 16*(r//8) + r % 8
            a(f"v_subrev_u32 v{B.MS+r}, {c}, v{T}")
        for k, r in enumerate(range(g0, g0+4)):
            a(f"v_cmp_le_u32_e64 s[{48+2*k}:{49+2*k}], 8, v{B.MS+r}")
        a("s_nop 0")
        for k, r in enumerate(range(g0, g0+4)):
            a(f"v_cndmask_b32_e64 v{B.MS+r}, 0, v{T+1}, s[{48+2*k}:{49+2*k}]")
    for g0 in (8, 12):
        for k, r in enumerate(range(g0, g0+4)):
            a(f"v_cmp_gt_i32_e64 s[{48+2*k}:{49+2*k}], v{T+2}, {r-17}")
        a("s_nop 0")
        for k, r in enumerate(range(g0, g0+4)):
            a(f"v_cndmask_b32_e64 v{B.MP+r}, 0, v{T+1}, s[{48+2*k}:{49+2*k}]")
    for r in range(8):
        a(f"v_mov_b32 v{B.MP+r}, 0")

def battn_compute(a):
    R = K2; T = R.T; B = BR
    a(m32(B.SS, B.KS, B.Q, B.MS))
    a(m32(B.SP, B.KP, B.Q, B.MP))
    a(m32(B.SS, B.KS+4, B.Q+4, B.SS))
    a(m32(B.SP, B.KP+4, B.Q+4, B.SP))
    for r in range(16): a(f"v_mov_b32 v{B.O+r}, 0")
    for r in range(4): a(f"v_mov_b32 v{B.L+r}, 0")
    a("s_nop 7")
    max_chain(a, T, [B.SS+r for r in range(16)] + [B.SP+r for r in range(8, 16)])
    cross_half(a, "v_max_f32", T, T+1)
    regs = [B.SS+r for r in range(16)] + [B.SP+r for r in range(8, 16)]
    for r in regs: a(f"v_sub_f32 v{r}, v{r}, v{T}")
    for r in regs: a(f"v_exp_f32 v{r}, v{r}")
    a("s_nop 1")
    a(sm32(B.O, B.VS, B.SS)); a(sm16(B.L, B.SS))
    a(sm32(B.O, B.VS+4, B.SS+8)); a(sm16(B.L, B.SS+8))
    a(sm32(B.O, B.VP, B.SP+8)); a(sm16(B.L, B.SP+8))

POS = [0, 3, 6, 8, 11, 14]
def phase(a, exps, mats, extra=None):
    extra = extra or {}
    k = 0
    for i, e in enumerate(exps):
        for x in extra.get(i, []): a(x)
        while k < len(mats) and POS[k + (6 - len(mats))] <= i:
            a(mats[k]); k += 1
        a(e)
    while k < len(mats):
        a(mats[k]); k += 1

def phaseA(a, c):
    R = K2
    S = R.SA[c]
    mats = [m32(R.SB[c], R.UK[c^1], R.QB, R.NMB), m32(R.SB[c], R.UK[c^1]+4, R.QB+4, R.SB[c]),
            sm32(R.OB, R.UV[c^1], R.SB[c^1]), sm16(R.LB, R.SB[c^1]),
            sm32(R.OB, R.UV[c^1]+4, R.SB[c^1]+8), sm16(R.LB, R.SB[c^1]+8)]
    phase(a, [f"v_exp_f32 v{S+r}, v{S+r}" for r in range(16)], mats)

def phaseB(a, c, reads, pre=(), with_s=True, post_dma=()):
    R = K2
    S = R.SB[c]
    mats = []
    if with_s:
        mats += [m32(R.SA[c^1], R.UK[c], R.QA, R.NMA), m32(R.SA[c^1], R.UK[c]+4, R.QA+4, R.SA[c^1])]
    mats += [sm32(R.OA, R.UV[c], R.SA[c]), sm16(R.LA, R.SA[c]),
             sm32(R.OA, R.UV[c]+4, R.SA[c]+8), sm16(R.LA, R.SA[c]+8)]
    for x in pre: a(x)
    extra = {}
    for k, rd in enumerate(reads):
        extra.setdefault(2 + 2*k, []).append(rd)
    for k, d in enumerate(post_dma):
        extra.setdefault(4 + 2*k, []).append(d)
    phase(a, [f"v_exp_f32 v{S+r}, v{S+r}" for r in range(16)], mats, extra)

def rdK(buf, areg, tile):
    return [f"ds_read_b128 {vr(K2.UK[buf]+4*ks,4)}, v{areg} offset:{tile*4096 + ks*1024}" for ks in range(2)]
def rdV(buf, areg, tile):
    return [f"ds_read_b128 {vr(K2.UV[buf]+4*s,4)}, v{areg} offset:{tile*4096 + 2048 + s*1024}" for s in range(2)]

def dma_block(a_list):
    d = [f"s_add_u32 m0, s{S2_M0}, s{S2_RN}\ns_nop 0\nbuffer_load_dwordx4 v{K2.DM}, s[{S2_WS}:{S2_WS+3}], s{S2_BLK} offen lds"]
    for j in range(1, 4):
        d.append(f"buffer_load_dwordx4 v{K2.DM}, s[{S2_WS}:{S2_WS+3}], s{S2_BLK} offen offset:{j*1024} lds")
    return d

def adv_dma(a):
    a(f"s_add_u32 s{S2_BLK}, s{S2_BLK}, 32768")
    a(f"s_add_u32 s{S2_RN}, s{S2_RN}, 32768")
    a(f"s_and_b32 s{S2_RN}, s{S2_RN}, {NRING*32768-1}")

def block_body(a, last):
    R = K2
    for i in range(4):
        c = i % 2
        phaseA(a, c)
        pre = ["s_waitcnt lgkmcnt(0)"]
        dma = []
        if i == 0: reads = rdK(c^1, R.A0, 2) + rdV(c^1, R.A0, 1)
        elif i == 1: reads = rdK(c^1, R.A0, 3) + rdV(c^1, R.A0, 2)
        elif i == 2:
            if not last:
                pre = [f"s_cmp_lt_u32 s{S2_N}, 6",
                       "s_cbranch_scc1 L_k2_w4",
                       "s_waitcnt vmcnt(0)"]
                reads = rdV(c^1, R.A0, 3) + rdK(c^1, R.A1, 0)
            else:
                reads = rdV(c^1, R.A0, 3)
        else:
            reads = [] if last else rdK(c^1, R.A1, 1) + rdV(c^1, R.A1, 0)
        if i == 2 and not last:
            for x in pre: a(x)
            a.label("L_k2_w4")
            a(f"s_waitcnt vmcnt({4*(NRING-3)}) lgkmcnt(0)")
            a("s_barrier")
            a(f"s_cmp_ge_u32 s{S2_N}, {8-(NRING-1)}")
            a("s_cbranch_scc1 L_k2_nodma")
            for x in dma_block(None): a(x)
            adv_dma(a)
            a.label("L_k2_nodma")
            phaseB(a, c, reads)
        else:
            phaseB(a, c, reads, pre=pre, with_s=not (last and i == 3))

def gen_k2(a, kname):
    R = K2; T = R.T; B = BR
    a.label(kname)
    a("s_cmp_ge_u32 s2, 256")
    a("s_cbranch_scc1 L_k2_end")
    a(f"s_load_dwordx2 s[38:39], s[0:1], {KA_WS}")
    ids(a, T)
    consts(a)
    a(f"s_lshl_b32 s44, s{S2_TB}, 3")
    a(f"s_lshl_b32 s45, s{S2_TG}, 1")
    a(f"s_add_u32 s44, s44, s45")
    a(f"s_add_u32 s{S2_TA}, s44, s{S2_BR}")
    a(f"s_xor_b32 s45, s{S2_BR}, 1")
    a(f"s_add_u32 s{S2_TBT}, s44, s45")
    a("s_waitcnt lgkmcnt(0)")
    srd(a, S2_WS, 38, WS_SIZE)
    W = f"s[{S2_WS}:{S2_WS+3}]"
    a(f"s_add_u32 s44, s{S2_H}, 32")
    a(f"s_lshl_b32 s44, s44, 6")
    a(f"s_add_u32 s45, s44, s{S2_TA}")
    a(f"s_lshl_b32 s46, s45, 11")
    a(f"s_lshl_b32 s47, s45, 12")
    a(f"s_add_u32 s47, s47, 0x{WS_KV:x}")
    a(f"s_and_b32 s48, s{S2_TA}, 3")
    a(f"s_cmp_eq_u32 s48, 0")
    a(f"s_cselect_b32 s49, 5, 1")
    a(f"s_cmp_lt_u32 s{S2_TA}, 8")
    a(f"s_cselect_b32 s50, 1, 0")
    a(f"s_cmp_eq_u32 s48, 0")
    a(f"s_cselect_b32 s50, s50, 0")
    a(f"s_cmp_eq_u32 s50, 1")
    a(f"s_cselect_b32 s49, 0, s49")
    a(f"s_lshl_b32 s49, s49, 12")
    a(f"s_sub_u32 s49, s47, s49")
    a(f"s_mov_b32 s56, s50")
    for ks in range(2): a(f"buffer_load_dwordx4 {vr(B.Q+4*ks,4)}, v{R.L16}, {W}, s46 offen offset:{ks*1024}")
    for ks in range(2): a(f"buffer_load_dwordx4 {vr(B.KS+4*ks,4)}, v{R.L16}, {W}, s47 offen offset:{ks*1024}")
    for ks in range(2): a(f"buffer_load_dwordx4 {vr(B.KP+4*ks,4)}, v{R.L16}, {W}, s49 offen offset:{ks*1024}")
    for ks in range(2): a(f"buffer_load_dwordx4 {vr(B.VS+4*ks,4)}, v{R.L16}, {W}, s47 offen offset:{2048+ks*1024}")
    a(f"buffer_load_dwordx4 {vr(B.VP,4)}, v{R.L16}, {W}, s49 offen offset:3072")
    a(f"s_lshl_b32 s51, s{S2_TA}, 8")
    a(f"s_add_u32 s51, s51, 0x{WS_G:x}")
    a(f"v_lshlrev_b32 v{T}, 2, v0")
    a(f"buffer_load_dword v{R.G}, v{T}, {W}, s51 offen")
    a(f"s_lshl_b32 s44, s{S2_H}, 6")
    a(f"s_add_u32 s45, s44, s{S2_TA}")
    a(f"s_lshl_b32 s45, s45, 11")
    a(f"s_add_u32 s46, s44, s{S2_TBT}")
    a(f"s_lshl_b32 s46, s46, 11")
    for ks in range(2): a(f"buffer_load_dwordx4 {vr(R.QA+4*ks,4)}, v{R.L16}, {W}, s45 offen offset:{ks*1024}")
    for ks in range(2): a(f"buffer_load_dwordx4 {vr(R.QB+4*ks,4)}, v{R.L16}, {W}, s46 offen offset:{ks*1024}")
    a(f"s_lshl_b32 s44, s{S2_WV}, 12")
    a(f"s_mov_b32 s{S2_M0}, s44")
    a(f"v_add_u32 v{R.DM}, s44, v{R.L16}")
    a(f"s_lshl_b32 s{S2_BLK}, s{S2_H}, 18")
    a(f"s_add_u32 s{S2_BLK}, s{S2_BLK}, 0x{WS_KV:x}")
    a(f"s_mov_b32 s{S2_RN}, 0")
    for n in range(NRING-1):
        for x in dma_block(None): a(x)
        adv_dma(a)
    nd = 4*(NRING-1)
    battn_masks(a, lambda a: a("s_mov_b32 s44, s56"))
    a(f"s_waitcnt vmcnt({nd+5})")
    battn_compute(a)
    a(f"s_waitcnt vmcnt({nd+4})")
    a(f"v_sub_f32 v{T+2}, 1.0, v{R.G}")
    a("s_nop 7")
    a(f"v_rcp_f32 v{T+3}, v{B.L}")
    a("s_nop 0")
    a(f"v_mul_f32 v{T+2}, v{T+2}, v{T+3}")
    a(f"s_lshl_b32 s44, s{S2_TA}, 6")
    a(f"s_add_u32 s44, s44, s{S2_H}")
    a(f"s_add_u32 s45, s44, 32")
    a(f"s_lshl_b32 s45, s45, 11")
    a(f"s_add_u32 s45, s45, 0x{WS_O:x}")
    a(f"s_lshl_b32 s57, s44, 11")
    a(f"s_add_u32 s57, s57, 0x{WS_O:x}")
    a("s_nop 3")
    finish_store(a, B.O, T+2, B.SS, 45, R.L16, S2_WS)
    a(f"s_lshl_b32 s44, s{S2_BR}, 14")
    a(f"v_add_u32 v{R.LB16}, s44, v{R.L16}")
    a(f"v_mov_b32 v{R.A0}, v{R.LB16}")
    a(f"v_add_u32 v{R.A1}, 32768, v{R.LB16}")
    a(f"s_mov_b32 s{S2_RING}, 32768")
    a(f"s_waitcnt vmcnt({nd-4+2})")
    a("s_barrier")
    for x in rdK(0, R.L16, 0): a(x)
    for x in rdK(1, R.A0, 0): a(x)
    for r in range(16):
        a(f"v_mov_b32 v{R.OA+r}, 0"); a(f"v_mov_b32 v{R.OB+r}, 0"); a(f"v_mov_b32 v{R.SB[1]+r}, 0")
    for r in range(4):
        a(f"v_mov_b32 v{R.LA+r}, 0"); a(f"v_mov_b32 v{R.LB+r}, 0")
    for r in range(8): a(f"v_mov_b32 v{R.UV[1]+r}, 0")
    a("s_waitcnt lgkmcnt(2)")
    a(m32(R.SA[1], R.UK[0], R.QA, -1)); a(m32(R.SB[0], R.UK[0], R.QB, -1))
    a(m32(R.SA[1], R.UK[0]+4, R.QA+4, R.SA[1])); a(m32(R.SB[0], R.UK[0]+4, R.QB+4, R.SB[0]))
    a("s_nop 7"); a("s_nop 3")
    max_chain(a, T, [R.SA[1]+r for r in range(16)])
    max_chain(a, T+2, [R.SB[0]+r for r in range(16)])
    cross_half(a, "v_max_f32", T, T+1)
    cross_half(a, "v_max_f32", T+2, T+3)
    for r in range(16):
        a(f"v_sub_f32 v{R.NMA+r}, 0, v{T}"); a(f"v_sub_f32 v{R.NMB+r}, 0, v{T+2}")
    a("s_waitcnt lgkmcnt(0)")
    for x in rdK(0, R.A0, 1) + rdV(0, R.A0, 0): a(x)
    a(m32(R.SA[0], R.UK[1], R.QA, R.NMA)); a(m32(R.SA[0], R.UK[1]+4, R.QA+4, R.SA[0]))
    a(f"s_mov_b32 s{S2_N}, 0")
    a("s_nop 7"); a("s_nop 3")
    a.label("L_k2_loop")
    block_body(a, last=False)
    a(f"v_mov_b32 v{R.A0}, v{R.A1}")
    a(f"s_add_u32 s{S2_RING}, s{S2_RING}, 32768")
    a(f"s_and_b32 s{S2_RING}, s{S2_RING}, {NRING*32768-1}")
    a(f"v_add_u32 v{R.A1}, s{S2_RING}, v{R.LB16}")
    a(f"s_add_u32 s{S2_N}, s{S2_N}, 1")
    a(f"s_cmp_lt_u32 s{S2_N}, 7")
    a("s_cbranch_scc1 L_k2_loop")
    block_body(a, last=True)
    a("s_nop 1")
    a(sm32(R.OB, R.UV[1], R.SB[1])); a(sm16(R.LB, R.SB[1]))
    a(sm32(R.OB, R.UV[1]+4, R.SB[1]+8)); a(sm16(R.LB, R.SB[1]+8))
    a(f"s_mul_i32 s44, s{S2_WV}, 5120")
    a(f"v_add_u32 v{T}, s44, v{R.L16}")
    a(f"s_xor_b32 s45, s{S2_WV}, 4")
    a(f"s_mul_i32 s45, s45, 5120")
    a(f"v_add_u32 v{T+1}, s45, v{R.L16}")
    a("s_nop 7"); a("s_nop 3")
    for q in range(4):
        a(f"ds_write_b128 v{T}, {vr(R.OB+4*q,4)} offset:{q*1024}")
    a(f"ds_write_b128 v{T}, {vr(R.LB,4)} offset:4096")
    a("s_waitcnt lgkmcnt(0)")
    a("s_barrier")
    for q in range(4):
        a(f"ds_read_b128 {vr(R.SA[0]+4*q,4)}, v{T+1} offset:{q*1024}")
    a(f"ds_read_b128 {vr(R.SB[0],4)}, v{T+1} offset:4096")
    a("s_waitcnt lgkmcnt(0)")
    for r in range(16): a(f"v_add_f32 v{R.OA+r}, v{R.OA+r}, v{R.SA[0]+r}")
    a(f"v_add_f32 v{R.LA}, v{R.LA}, v{R.SB[0]}")
    a(f"v_mov_b32 v{T+2}, 0")
    for r in range(16): a(f"v_fma_f32 v{T+2}, v{R.OA+r}, 0, v{T+2}")
    a(f"v_add_f32 v{T+2}, v{T+2}, v{R.LA}")
    a(f"s_mov_b32 s44, 0x{f2u(2.0**40 if not FORCE_FALLBACK else -1.0):x}")
    a(f"v_cmp_nlt_f32 vcc, v{T+2}, s44")
    a("s_nop 4")
    a("s_cbranch_vccz L_k2_fin")
    gen_fallback(a)
    a.label("L_k2_fin")
    a(f"v_rcp_f32 v{T+3}, v{R.LA}")
    a("s_nop 0")
    a(f"v_mul_f32 v{T+2}, v{R.G}, v{T+3}")
    finish_store(a, R.OA, T+2, R.SA[0], 57, R.L16, S2_WS)
    a.label("L_k2_end")
    a("s_endpgm")

def gen_fallback(a):
    R = K2; T = R.T
    W = f"s[{S2_WS}:{S2_WS+3}]"
    M, L, AL, TM, TT = T+4, T+5, T+6, T+7, T+8
    S = R.SA[0]
    for r in range(16): a(f"v_mov_b32 v{R.OA+r}, 0")
    a(f"v_mov_b32 v{M}, 0xff800000")
    a(f"v_mov_b32 v{L}, 0")
    a(f"s_lshl_b32 s44, s{S2_H}, 18")
    a(f"s_add_u32 s44, s44, 0x{WS_KV:x}")
    a("s_mov_b32 s45, 64")
    a.label("L_k2_fb")
    for ks in range(2): a(f"buffer_load_dwordx4 {vr(R.UK[0]+4*ks,4)}, v{R.L16}, {W}, s44 offen offset:{ks*1024}")
    for s in range(2): a(f"buffer_load_dwordx4 {vr(R.UV[0]+4*s,4)}, v{R.L16}, {W}, s44 offen offset:{2048+s*1024}")
    a("s_waitcnt vmcnt(0)")
    a(m32(S, R.UK[0], R.QA, -1)); a(m32(S, R.UK[0]+4, R.QA+4, S))
    a("s_nop 7"); a("s_nop 3")
    max_chain(a, TM, [S+r for r in range(16)])
    cross_half(a, "v_max_f32", TM, TT)
    a(f"v_max_f32 v{TM}, v{TM}, v{M}")
    a(f"v_sub_f32 v{AL}, v{M}, v{TM}")
    a(f"v_exp_f32 v{AL}, v{AL}")
    a(f"v_mov_b32 v{M}, v{TM}")
    for r in range(16): a(f"v_sub_f32 v{S+r}, v{S+r}, v{M}")
    for r in range(16): a(f"v_exp_f32 v{S+r}, v{S+r}")
    a(f"v_mul_f32 v{L}, v{L}, v{AL}")
    for r in range(16):
        a(f"v_and_b32 v{TT}, 0xffff0000, v{S+r}")
        a(f"v_add_f32 v{L}, v{L}, v{TT}")
    for r in range(16): a(f"v_mul_f32 v{R.OA+r}, v{R.OA+r}, v{AL}")
    a("s_nop 1")
    a(sm32(R.OA, R.UV[0], S)); a(sm32(R.OA, R.UV[0]+4, S+8))
    a("s_add_u32 s44, s44, 4096")
    a("s_sub_u32 s45, s45, 1")
    a("s_cmp_lg_u32 s45, 0")
    a("s_nop 7"); a("s_nop 7")
    a("s_cbranch_scc1 L_k2_fb")
    cross_half(a, "v_add_f32", L, TT)
    a(f"v_mov_b32 v{R.LA}, v{L}")
```

```python
from gen2 import *

K3_LDS = 4 * 32768
class K3:
    ACC = 0
    OF = 32
    WF = 160
    RA = 176
    DV = 180
    L16 = 184
    OV = 185
    T = 186
    NV = 200
S3_O, S3_W, S3_OUT = 4, 8, 12
S3_MT, S3_NT, S3_WV, S3_KH, S3_TG, S3_M0, S3_OB, S3_WB = 20, 21, 22, 23, 24, 25, 26, 27

class VMQ:
    def __init__(self): self.q = []
    def issue(self, tag): self.q.append(tag)
    def wait(self, tag):
        idx = max(i for i, t in enumerate(self.q) if t == tag)
        n = len(self.q) - 1 - idx
        self.q = self.q[idx+1:]
        return n

def gen_k3(a, kname):
    R = K3; T = R.T
    a.label(kname)
    a("s_cmp_ge_u32 s2, 256")
    a("s_cbranch_scc1 L_k3_end")
    a(f"s_load_dwordx2 s[30:31], s[0:1], {KA_WOA}")
    a(f"s_load_dwordx2 s[32:33], s[0:1], {KA_WOB}")
    a(f"s_load_dwordx2 s[34:35], s[0:1], {KA_OUT}")
    a(f"s_load_dwordx2 s[38:39], s[0:1], {KA_WS}")
    a("s_and_b32 s40, s2, 7")
    a("s_lshr_b32 s41, s2, 3")
    a("s_lshr_b32 s42, s40, 1")
    a("s_lshl_b32 s42, s42, 2")
    a("s_and_b32 s43, s41, 3")
    a(f"s_add_u32 s{S3_MT}, s42, s43")
    a("s_and_b32 s42, s40, 1")
    a("s_lshl_b32 s42, s42, 3")
    a("s_lshr_b32 s43, s41, 2")
    a(f"s_add_u32 s{S3_NT}, s42, s43")
    a(f"v_lshrrev_b32 v{T}, 6, v0")
    a(f"v_and_b32 v0, 63, v0")
    a("s_nop 0")
    a(f"v_readfirstlane_b32 s{S3_WV}, v{T}")
    a("s_nop 1")
    a(f"s_lshr_b32 s{S3_KH}, s{S3_WV}, 2")
    a(f"s_and_b32 s{S3_TG}, s{S3_WV}, 3")
    a(f"v_lshlrev_b32 v{R.L16}, 4, v0")
    a(f"s_lshl_b32 s44, s{S3_MT}, 2")
    a(f"s_add_u32 s44, s44, s{S3_TG}")
    a(f"s_lshl_b32 s44, s44, 1")
    a(f"s_add_u32 s44, s44, s{S3_KH}")
    a(f"s_lshl_b32 s44, s44, 16")
    a(f"s_add_u32 s{S3_OB}, s44, 0x{WS_O:x}")
    a(f"v_lshrrev_b32 v{T}, 2, v0")
    a(f"v_lshlrev_b32 v{T}, 11, v{T}")
    a(f"v_and_b32 v{T+1}, 3, v0")
    a(f"v_lshlrev_b32 v{T+1}, 4, v{T+1}")
    a(f"s_lshl_b32 s44, s{S3_NT}, 7")
    a(f"v_add3_u32 v{R.DV}, v{T}, v{T+1}, s44")
    a(f"v_add_u32 v{R.DV+1}, 32768, v{R.DV}")
    a(f"v_add_u32 v{R.DV+2}, 64, v{R.DV}")
    a(f"v_add_u32 v{R.DV+3}, 32768+64, v{R.DV}")
    a(f"s_lshl_b32 s{S3_WB}, s{S3_TG}, 16")
    a(f"s_lshl_b32 s44, s{S3_KH}, 14")
    a(f"s_lshl_b32 s45, s{S3_TG}, 11")
    a(f"s_add_u32 s{S3_M0}, s44, s45")
    a(f"v_lshrrev_b32 v{T}, 5, v0")
    a(f"v_lshlrev_b32 v{T}, 8, v{T}")
    a(f"v_bfe_u32 v{T+1}, v0, 2, 2")
    a(f"v_lshlrev_b32 v{T+1}, 6, v{T+1}")
    a(f"v_bfe_u32 v{T+2}, v0, 4, 1")
    a(f"v_lshlrev_b32 v{T+2}, 5, v{T+2}")
    a(f"v_add3_u32 v{T}, v{T}, v{T+1}, v{T+2}")
    a(f"v_and_b32 v{T+1}, 3, v0")
    a(f"v_lshlrev_b32 v{T+1}, 3, v{T+1}")
    a(f"s_mul_i32 s44, s{S3_KH}, 16384+8192")
    a(f"v_add3_u32 v{R.RA}, v{T}, v{T+1}, s44")
    a(f"v_add_u32 v{R.RA+1}, 65536, v{R.RA}")
    a(f"v_xor_b32 v{R.RA+2}, 8192, v{R.RA}")
    a(f"v_add_u32 v{R.RA+3}, 65536, v{R.RA+2}")
    a(f"v_and_b32 v{R.OV}, 31, v0")
    a(f"v_lshlrev_b32 v{R.OV}, 12, v{R.OV}")
    a(f"v_lshrrev_b32 v{T+3}, 5, v0")
    a(f"v_lshlrev_b32 v{T+3}, 4, v{T+3}")
    a(f"v_add_u32 v{R.OV}, v{R.OV}, v{T+3}")
    a("s_waitcnt lgkmcnt(0)")
    srd(a, S3_O, 38, WS_SIZE)
    a(f"s_cmp_eq_u32 s{S3_KH}, 0")
    a(f"s_cselect_b32 s{S3_W}, s30, s32")
    a(f"s_cselect_b32 s{S3_W+1}, s31, s33")
    a(f"s_mov_b32 s{S3_W+2}, 0x{1024*2048:x}")
    a(f"s_mov_b32 s{S3_W+3}, 0x20000")
    srd(a, S3_OUT, 34, 2048*2048)
    q = VMQ()
    def dma(s):
        out = []
        for b in range(2):
            for hf in range(2):
                out.append(f"s_add_u32 m0, s{S3_M0}, {(s%4)*32768 + b*8192 + hf*1024}\ns_nop 0\n"
                           f"buffer_load_dwordx4 v{R.DV+2*b+hf}, s[{S3_W}:{S3_W+3}], s{S3_WB} offen lds")
        return out
    def emit_dma(s):
        for x in dma(s):
            a(x); q.issue(('w', s))
        a(f"s_add_u32 s{S3_WB}, s{S3_WB}, {128*2048}")
    def oload(s, f):
        return f"buffer_load_dwordx4 {vr(R.OF + (s%4)*32 + f*4, 4)}, v{R.L16}, s[{S3_O}:{S3_O+3}], s{S3_OB} offen offset:{(f%4)*1024}"
    def emit_o(s):
        for f in range(8):
            a(oload(s, f)); q.issue(('o', s))
            if f % 4 == 3: a(f"s_add_u32 s{S3_OB}, s{S3_OB}, 4096")
    for s in range(4):
        emit_dma(s); emit_o(s)
    for r in range(32): a(f"v_mov_b32 v{R.ACC+r}, 0")
    def reads(s, f, buf):
        hh, ks = f // 2, f % 2
        out = []
        for blk in range(2):
            reg = R.RA + 2*blk + (1 if (s % 4) >= 2 else 0)
            for tt in range(2):
                off = (s % 2)*32768 + (32*hh + 16*ks + 8*tt)*64
                out.append(f"ds_read_b64_tr_b16 {vr(R.WF + buf*8 + blk*4 + 2*tt, 2)}, v{reg} offset:{off}")
        return out
    n = q.wait(('o', 0))
    a(f"s_waitcnt vmcnt({n})")
    a("s_barrier")
    for x in reads(0, 0, 0): a(x)
    for s in range(8):
        for f in range(8):
            buf = f % 2
            if f == 7 and s < 7:
                n = q.wait(('o', s+1))
                a(f"s_waitcnt vmcnt({n}) lgkmcnt(0)")
                a("s_barrier")
                nxt = reads(s+1, 0, buf^1)
            else:
                a("s_waitcnt lgkmcnt(0)")
                nxt = reads(s, f+1, buf^1) if f < 7 else []
            of = R.OF + (s%4)*32 + f*4
            m = [m32(R.ACC+16*blk, R.WF + buf*8 + blk*4, of, R.ACC+16*blk) for blk in range(2)]
            a(nxt[0]) if nxt else None
            a(nxt[1]) if nxt else None
            a(m[0])
            a(nxt[2]) if nxt else None
            a(nxt[3]) if nxt else None
            a(m[1])
            if f == 7 and s + 4 < 8:
                emit_dma(s+4); emit_o(s+4)
    a(f"s_lshl_b32 s44, s{S3_WV}, 12")
    a(f"v_add_u32 v{T}, s44, v{R.L16}")
    a(f"s_xor_b32 s45, s44, 16384")
    a(f"v_add_u32 v{T+1}, s45, v{R.L16}")
    a(f"s_lshr_b32 s46, s{S3_MT}, 1")
    a(f"s_lshl_b32 s46, s46, 8")
    a(f"s_and_b32 s47, s{S3_MT}, 1")
    a(f"s_add_u32 s46, s46, s47")
    a(f"s_lshl_b32 s47, s{S3_TG}, 6")
    a(f"s_add_u32 s46, s46, s47")
    a(f"s_lshl_b32 s46, s46, 11")
    a(f"s_lshl_b32 s47, s{S3_NT}, 7")
    a(f"s_add_u32 s46, s46, s47")
    a(f"s_lshl_b32 s47, s{S3_KH}, 6")
    a(f"s_add_u32 s46, s46, s47")
    a("s_nop 7")
    for qq in range(4):
        a(f"ds_write_b128 v{T}, {vr(R.ACC+16+4*qq,4)} offset:{qq*1024}")
    a("s_waitcnt lgkmcnt(0)")
    a("s_barrier")
    for qq in range(4):
        a(f"ds_read_b128 {vr(R.OF+4*qq,4)}, v{T+1} offset:{qq*1024}")
    a("s_waitcnt lgkmcnt(0)")
    for r in range(16): a(f"v_add_f32 v{R.ACC+r}, v{R.ACC+r}, v{R.OF+r}")
    P = R.OF + 16
    for m in range(8): a(f"v_cvt_pk_bf16_f32 v{P+m}, v{R.ACC+2*m}, v{R.ACC+2*m+1}")
    a("s_nop 1")
    a(f"v_permlane32_swap_b32 v{P}, v{P+2}")
    a(f"v_permlane32_swap_b32 v{P+1}, v{P+3}")
    a(f"v_permlane32_swap_b32 v{P+4}, v{P+6}")
    a(f"v_permlane32_swap_b32 v{P+5}, v{P+7}")
    a("s_nop 1")
    for qq in range(2):
        a(f"buffer_store_dwordx4 {vr(P+4*qq,4)}, v{R.OV}, s[{S3_OUT}:{S3_OUT+3}], s46 offen offset:{32*qq}")
    a.label("L_k3_end")
    a("s_endpgm")

def full3(path=None):
    ks = []
    a = Asm(); gen_gemm1(a, 'gm_qkv_kernel'); gen_gemm1_epilogue_unfused(a); e = check(a.lines)
    ks.append(('gm_qkv_kernel', a, 256, 512, G1_LDS, G1.NV))
    a = Asm(); gen_k2(a, 'gm_attn_kernel'); e += check(a.lines)
    ks.append(('gm_attn_kernel', a, 256, 512, K2_LDS, K2.NV))
    a = Asm(); gen_k3(a, 'gm_out_kernel'); e += check(a.lines)
    ks.append(('gm_out_kernel', a, 256, 512, K3_LDS, K3.NV))
    assert not e
    return ks
```

```python
import sys
from hx import *
import gen1, gen2, gen3
from gen3 import *
ref = open('cdna_kernels/' + NAME + '.s.ref').read().split('\n')
hdr = [l for l in ref if l.startswith(';') and '@launch' not in l and 'Override launch' not in l and 'grid=ceil' not in l]
lead = []
for l in ref:
    if not l.startswith(';'): break
    if '@launch' in l: continue
    lead.append(l)
def write(ks, path):
    txt = '\n'.join(lead) + '\n' + build_file(ks) + '\n'
    open(path, 'w').write(txt)
    print(path, len(txt), 'bytes')
if __name__ == '__main__':
    path = sys.argv[1] if len(sys.argv) > 1 else 'cdna_kernels/' + NAME + '.s'
    write(full3(), path)
```

```python
from mkfile import *
ks = full3()
def empty(n):
    a = Asm(); a.label(n); a("s_endpgm"); return a
mk = lambda n: (n, empty(n), 256, 512, 0, 32)
write(ks + [mk(f'e{i}_kernel') for i in range(4)], 'ovh_plus4.s')
write(ks, 'ovh_base.s')
```

```python
from asmlib import *
import math

NAME = 'gated_mix__mha_block__sliding_local_dilated__prompt'
KA_X, KA_WQA, KA_WOA, KA_BX, KA_WQB, KA_WOB, KA_GW, KA_OUT, KA_DBG, KA_WS = [8*i for i in range(10)]
WS_Q  = 0
WS_KV = 8 << 20
WS_G  = 24 << 20
WS_O  = 32 << 20
WS_SIZE = 268435456
QSCALE = (32 ** -0.5) * math.log2(math.e)

def f2u(x):
    import struct
    return struct.unpack('<I', struct.pack('<f', x))[0]

WS_T = 48 << 20
STAMPS = False
NSTAMP = 6
S_ST = 64
def stamp(a, i):
    if not STAMPS: return
    a(f"s_memtime s[96:97]")
    a(f"s_memrealtime s[98:99]")
    a("s_waitcnt lgkmcnt(0)")
    a(f"s_mov_b32 s{S_ST+2*i}, s96")
    a(f"s_mov_b32 s{S_ST+2*i+1}, s98")
def stamp_flush(a, n, srd_ws, vt, wave_sgpr, tag, kidx=0):
    if not STAMPS: return
    a(f"s_cmp_lg_u32 s{wave_sgpr}, 0")
    a(f"s_cbranch_scc1 L_st_skip_{tag}")
    a(f"s_lshl_b32 s96, s2, 7")
    a(f"s_add_u32 s96, s96, 0x{WS_T + kidx*32768:x}")
    a(f"v_mov_b32 v{vt+1}, 0")
    for i in range(2*n):
        a(f"v_mov_b32 v{vt}, s{S_ST+i}")
        a(f"buffer_store_dword v{vt}, v{vt+1}, s[{srd_ws}:{srd_ws+3}], s96 offen offset:{4*i}")
    a.label(f"L_st_skip_{tag}")

def srd(a, s, ptr_lo, size, add=None):
    if add:
        a(f"s_add_u32 s{s}, s{ptr_lo}, 0x{add:x}")
        a(f"s_addc_u32 s{s+1}, s{ptr_lo+1}, 0")
    else:
        a(f"s_mov_b32 s{s}, s{ptr_lo}")
        a(f"s_mov_b32 s{s+1}, s{ptr_lo+1}")
    a(f"s_mov_b32 s{s+2}, 0x{size:x}")
    a(f"s_mov_b32 s{s+3}, 0x20000")

L_X = [0, 32768]
L_W = [65536, 65536 + 24576]
L_GW = 65536 + 49152
G1_LDS = L_GW + 2048

class G1:
    ACC = 0
    XF = 96
    WF = 112
    GF = 136
    GACC = 144
    XA = 145
    WA = 153
    GA = 154
    XD = 155
    WD = 159
    T0 = 162
    LANE = 170
    NV = 176

S_X, S_W, S_WS, S_GW = 4, 8, 12, 16
S_H, S_TB, S_WV, S_KX, S_KW, S_CNT, S_M0X, S_M0W, S_BR = 20, 21, 22, 23, 24, 25, 26, 27, 28

def acc(f, b): return G1.ACC + (f*3+b)*16
def xf(buf, f): return G1.XF + (buf*2+f)*4
def wf(buf, b): return G1.WF + (buf*3+b)*4
def gf(buf): return G1.GF + buf*4

def g1_reads(a, stage, s, buf):
    r = []
    for f in range(2):
        r.append(f"ds_read_b128 {vr(xf(buf,f),4)}, v{G1.XA+f*4+s} offset:{L_X[stage]}")
    for b in range(3):
        for tt in range(2):
            r.append(f"ds_read_b64_tr_b16 {vr(wf(buf,b)+2*tt,2)}, v{G1.WA} offset:{stage*24576 + s*3072 + b*1024 + tt*256}")
    return r

def g1_gate_read(kstep_sym, s, buf):
    return f"ds_read_b128 {vr(gf(buf),4)}, v{G1.GA} offset:{s*32}"

def g1_mfmas(buf):
    m = []
    for f in range(2):
        for b in range(3):
            A, B = (wf(buf,b), xf(buf,f)) if b < 2 else (xf(buf,f), wf(buf,b))
            m.append(f"v_mfma_f32_32x32x16_bf16 {vr(acc(f,b),16)}, {vr(A,4)}, {vr(B,4)}, {vr(acc(f,b),16)}")
    return m

def g1_dots(buf):
    return [f"v_dot2_f32_bf16 v{G1.GACC}, v{xf(buf,0)+i}, v{gf(buf)+i}, v{G1.GACC}" for i in range(4)]

def g1_dma(stage):
    d = []
    d.append(f"s_add_u32 m0, s{S_M0X}, {L_X[stage]}\ns_nop 0")
    for j in range(4):
        d.append(f"buffer_load_dwordx4 v{G1.XD+j}, s[{S_X}:{S_X+3}], s{S_KX} offen offset:{j*1024} lds")
    d.append(f"s_add_u32 m0, s{S_M0W}, {stage*24576}\ns_nop 0")
    for b in range(3):
        d.append(f"buffer_load_dwordx4 v{G1.WD+b}, s[{S_W}:{S_W+3}], s{S_KW} offen offset:{b*1024} lds")
    return d

def interleave(main, fill):
    out = []; n = len(main); k = 0
    for i, m in enumerate(main):
        out.append(m)
        upto = (len(fill) * (i+1) + n - 1) // n
        while k < upto and k < len(fill):
            out.append(fill[k]); k += 1
    return out

def g1_step(a, stage, dma_next, last):
    for s in range(4):
        buf = s % 2
        if s < 3:
            a("s_waitcnt lgkmcnt(0)")
            fill = g1_reads(a, stage, s+1, buf^1) + [g1_gate_read(None, s+1, buf^1)]
            main = g1_mfmas(buf)
            dots = g1_dots(buf)
            seq = interleave(main, fill)
            for x in seq: a(x)
            for x in dots: a(x)
        else:
            a("s_waitcnt lgkmcnt(0)")
            if not last:
                a("s_waitcnt vmcnt(0)")
                a("s_barrier")
                a(f"v_add_u32 v{G1.GA}, 128, v{G1.GA}")
                fill = g1_reads(a, stage^1, 0, buf^1) + [g1_gate_read(None, 0, buf^1)]
                if dma_next:
                    fill = fill + g1_dma(stage) + [f"s_add_u32 s{S_KX}, s{S_KX}, 128", f"s_add_u32 s{S_KW}, s{S_KW}, {64*6144}"]
            else:
                fill = []
            main = g1_mfmas(buf)
            seq = interleave(main, fill)
            for x in seq: a(x)
            for x in g1_dots(buf): a(x)

def gen_gemm1(a, kname):
    G = G1
    a.label(kname)
    a("s_cmp_ge_u32 s2, 256")
    a("s_cbranch_scc1 L_g1_end")
    stamp(a, 0)
    a(f"s_load_dwordx2 s[30:31], s[0:1], {KA_X}")
    a(f"s_load_dwordx2 s[32:33], s[0:1], {KA_WQA}")
    a(f"s_load_dwordx2 s[34:35], s[0:1], {KA_WQB}")
    a(f"s_load_dwordx2 s[36:37], s[0:1], {KA_GW}")
    a(f"s_load_dwordx2 s[38:39], s[0:1], {KA_WS}")
    a(f"s_and_b32 s40, s2, 7")
    a(f"s_lshr_b32 s41, s2, 3")
    a(f"s_and_b32 s42, s41, 3")
    a(f"s_lshl_b32 s40, s40, 2")
    a(f"s_add_u32 s{S_H}, s40, s42")
    a(f"s_lshr_b32 s{S_TB}, s41, 2")
    a(f"v_lshrrev_b32 v{G.T0}, 6, v0")
    a(f"v_and_b32 v0, 63, v0")
    a(f"v_mov_b32 v{G.LANE}, v0")
    a(f"v_readfirstlane_b32 s{S_WV}, v{G.T0}")
    a("s_nop 1")
    a(f"s_lshr_b32 s{S_BR}, s{S_WV}, 2")
    a(f"s_and_b32 s43, s{S_WV}, 3")
    T = G.T0
    a(f"v_lshrrev_b32 v{T}, 3, v0")
    a(f"s_lshl_b32 s44, s43, 5")
    a(f"v_add_u32 v{T}, s44, v{T}")
    a(f"v_lshlrev_b32 v{T}, 1, v{T}")
    a(f"s_lshl_b32 s44, s{S_TB}, 8")
    a(f"s_add_u32 s44, s44, s{S_BR}")
    a(f"v_add_u32 v{T}, s44, v{T}")
    a(f"v_lshlrev_b32 v{T}, 11, v{T}")
    a(f"v_and_b32 v{T+1}, 7, v0")
    a(f"v_lshrrev_b32 v{T+2}, 4, v0")
    a(f"v_xor_b32 v{T+1}, v{T+1}, v{T+2}")
    a(f"v_xor_b32 v{T+2}, 4, v{T+1}")
    a(f"v_lshlrev_b32 v{T+1}, 4, v{T+1}")
    a(f"v_lshlrev_b32 v{T+2}, 4, v{T+2}")
    for j in range(4):
        src = T+1 if j % 2 == 0 else T+2
        a(f"v_add_u32 v{G.XD+j}, v{T}, v{src}")
        if j: a(f"v_add_u32 v{G.XD+j}, {j*(16*2048 - 1024)}, v{G.XD+j}")
    a(f"s_lshl_b32 s{S_M0X}, s{S_WV}, 12")
    a(f"v_lshrrev_b32 v{T}, 2, v0")
    a(f"s_lshl_b32 s44, s43, 4")
    a(f"v_add_u32 v{T}, s44, v{T}")
    a(f"s_movk_i32 s44, 6144")
    a(f"v_mul_lo_u32 v{T}, v{T}, s44")
    a(f"v_and_b32 v{T+1}, 3, v0")
    a(f"v_lshlrev_b32 v{T+1}, 4, v{T+1}")
    a(f"s_lshl_b32 s44, s{S_H}, 6")
    a(f"v_add3_u32 v{G.WD}, v{T}, v{T+1}, s44")
    a(f"v_add_u32 v{G.WD+1}, 1024, v{G.WD}")
    a(f"v_add_u32 v{G.WD+2}, 2048, v{G.WD}")
    a(f"s_mul_i32 s44, s{S_BR}, 12288")
    a(f"s_mul_i32 s45, s43, 3072")
    a(f"s_add_u32 s{S_M0W}, s44, s45")
    a(f"s_add_u32 s{S_M0W}, s{S_M0W}, {L_W[0]}")
    a(f"v_and_b32 v{T}, 31, v0")
    a(f"v_lshrrev_b32 v{T+1}, 5, v0")
    a(f"v_lshrrev_b32 v{T+2}, 1, v{T}")
    a(f"v_and_b32 v{T+2}, 7, v{T+2}")
    a(f"v_xor_b32 v{T+1}, v{T+1}, v{T+2}")
    a(f"v_lshlrev_b32 v{T+1}, 4, v{T+1}")
    a(f"v_lshlrev_b32 v{T}, 7, v{T}")
    a(f"v_add_u32 v{T}, v{T}, v{T+1}")
    a(f"s_lshl_b32 s44, s43, 13")
    a(f"v_add_u32 v{T}, s44, v{T}")
    a(f"s_lshl_b32 s44, s{S_BR}, 12")
    a(f"s_xor_b32 s45, s44, 4096")
    for s in range(4):
        a(f"v_xor_b32 v{T+1}, {32*s}, v{T}")
        a(f"v_add_u32 v{G.XA+s}, s44, v{T+1}")
        a(f"v_add_u32 v{G.XA+4+s}, s45, v{T+1}")
    a(f"v_lshrrev_b32 v{T}, 5, v0")
    a(f"v_lshlrev_b32 v{T}, 9, v{T}")
    a(f"v_bfe_u32 v{T+1}, v0, 2, 2")
    a(f"v_lshlrev_b32 v{T+1}, 6, v{T+1}")
    a(f"v_bfe_u32 v{T+2}, v0, 4, 1")
    a(f"v_lshlrev_b32 v{T+2}, 5, v{T+2}")
    a(f"v_add3_u32 v{T}, v{T}, v{T+1}, v{T+2}")
    a(f"v_and_b32 v{T+1}, 3, v0")
    a(f"v_lshlrev_b32 v{T+1}, 3, v{T+1}")
    a(f"s_mul_i32 s44, s{S_BR}, 12288")
    a(f"s_add_u32 s44, s44, {L_W[0]}")
    a(f"v_add3_u32 v{G.WA}, v{T}, v{T+1}, s44")
    a(f"v_lshrrev_b32 v{T}, 5, v0")
    a(f"v_lshlrev_b32 v{T}, 4, v{T}")
    a(f"v_add_u32 v{G.GA}, {L_GW}, v{T}")
    a("s_waitcnt lgkmcnt(0)")
    srd(a, S_X, 30, 2048*2048)
    a(f"s_cmp_eq_u32 s{S_BR}, 0")
    a(f"s_cselect_b32 s{S_W}, s32, s34")
    a(f"s_cselect_b32 s{S_W+1}, s33, s35")
    a(f"s_mov_b32 s{S_W+2}, 0x{1024*6144:x}")
    a(f"s_mov_b32 s{S_W+3}, 0x20000")
    srd(a, S_GW, 36, 2048)
    srd(a, S_WS, 38, WS_SIZE)
    a(f"s_cmp_ge_u32 s{S_WV}, 2")
    a("s_cbranch_scc1 L_g1_nogate")
    a(f"v_lshlrev_b32 v{T}, 4, v0")
    a(f"s_lshl_b32 s44, s{S_WV}, 10")
    a(f"s_add_u32 m0, s44, {L_GW}")
    a("s_nop 0")
    a(f"buffer_load_dwordx4 v{T}, s[{S_GW}:{S_GW+3}], s44 offen lds")
    a.label("L_g1_nogate")
    a(f"s_mov_b32 s{S_KX}, 0")
    a(f"s_mov_b32 s{S_KW}, 0")
    for x in g1_dma(0): a(x)
    a(f"s_mov_b32 s{S_KX}, 128")
    a(f"s_mov_b32 s{S_KW}, {64*6144}")
    for x in g1_dma(1): a(x)
    a(f"s_mov_b32 s{S_KX}, 256")
    a(f"s_mov_b32 s{S_KW}, {2*64*6144}")
    for r in range(96): a(f"v_mov_b32 v{G.ACC+r}, 0")
    a(f"v_mov_b32 v{G.GACC}, 0")
    stamp(a, 1)
    a("s_waitcnt vmcnt(7)")
    a("s_barrier")
    stamp(a, 2)
    for x in g1_reads(a, 0, 0, 0) + [g1_gate_read(None, 0, 0)]: a(x)
    a(f"s_mov_b32 s{S_CNT}, 7")
    a.label("L_g1_loop")
    g1_step(a, 0, True, False)
    g1_step(a, 1, True, False)
    a(f"s_sub_u32 s{S_CNT}, s{S_CNT}, 1")
    a(f"s_cmp_lg_u32 s{S_CNT}, 0")
    a("s_cbranch_scc1 L_g1_loop")
    g1_step(a, 0, False, False)
    g1_step(a, 1, False, True)
    stamp(a, 3)

def g1_pack(a, f, b, dst, scale=False):
    base = acc(f, b)
    for m in range(8):
        if scale:
            a(f"v_mul_f32 v{base+2*m}, s46, v{base+2*m}")
            a(f"v_mul_f32 v{base+2*m+1}, s46, v{base+2*m+1}")
        a(f"v_cvt_pk_bf16_f32 v{dst+m}, v{base+2*m}, v{base+2*m+1}")

def gen_gemm1_epilogue_unfused(a):
    G = G1; T = G.T0
    a("s_nop 7")
    a("s_nop 3")
    a(f"s_mov_b32 s46, 0x{f2u(QSCALE):x}")
    a(f"v_lshlrev_b32 v{T}, 4, v{G.LANE}")
    a(f"v_and_b32 v{T+6}, 0x33, v{G.LANE}")
    a(f"v_lshrrev_b32 v{T+7}, 1, v{G.LANE}")
    a(f"v_and_b32 v{T+7}, 4, v{T+7}")
    a(f"v_or_b32 v{T+6}, v{T+6}, v{T+7}")
    a(f"v_lshlrev_b32 v{T+7}, 1, v{G.LANE}")
    a(f"v_and_b32 v{T+7}, 8, v{T+7}")
    a(f"v_or_b32 v{T+6}, v{T+6}, v{T+7}")
    a(f"v_lshlrev_b32 v{T+6}, 4, v{T+6}")
    a(f"s_lshl_b32 s44, s{S_BR}, 5")
    a(f"s_add_u32 s44, s44, s{S_H}")
    a(f"s_lshl_b32 s44, s44, 6")
    a(f"s_lshl_b32 s45, s{S_TB}, 3")
    a(f"s_add_u32 s44, s44, s45")
    a(f"s_lshl_b32 s45, s43, 1")
    a(f"s_add_u32 s44, s44, s45")
    P = G.XF
    for f in range(2):
        a(f"s_xor_b32 s45, s{S_BR}, {f}")
        a(f"s_add_u32 s45, s44, s45")
        a(f"s_lshl_b32 s47, s45, 11")
        a(f"s_lshl_b32 s48, s45, 12")
        a(f"s_add_u32 s48, s48, 0x{WS_KV:x}")
        for b in range(3):
            dst = P + (b % 2) * 8 + (f % 2) * 16
            g1_pack(a, f, b, dst, scale=(b == 0))
            for ks in range(2):
                if b == 0:
                    a(f"buffer_store_dwordx4 {vr(dst+4*ks,4)}, v{T}, s[{S_WS}:{S_WS+3}], s47 offen offset:{ks*1024}")
                else:
                    a(f"buffer_store_dwordx4 {vr(dst+4*ks,4)}, v{T if b == 2 else T+6}, s[{S_WS}:{S_WS+3}], s48 offen offset:{(b-1)*2048 + ks*1024}")
            a("s_nop 1")
    a(f"v_mov_b32 v{T+1}, v{G.GACC}")
    a("s_nop 1")
    a(f"v_permlane32_swap_b32 v{G.GACC}, v{T+1}")
    a("s_nop 1")
    a(f"v_add_f32 v{T+1}, v{G.GACC}, v{T+1}")
    a(f"v_mul_f32 v{T+1}, 0x{f2u(-math.log2(math.e)):x}, v{T+1}")
    a(f"v_exp_f32 v{T+1}, v{T+1}")
    a("s_nop 0")
    a(f"v_add_f32 v{T+1}, 1.0, v{T+1}")
    a(f"v_rcp_f32 v{T+1}, v{T+1}")
    if STAMPS:
        stamp(a, 4)
        a("s_waitcnt vmcnt(0)")
        stamp(a, 5)
        stamp_flush(a, NSTAMP, S_WS, T+4, S_WV, 'g1')
    a(f"s_cmp_lg_u32 s{S_H}, 0")
    a("s_cbranch_scc1 L_g1_end")
    a(f"s_lshl_b32 s44, s{S_TB}, 3")
    a(f"s_lshl_b32 s45, s43, 1")
    a(f"s_add_u32 s44, s44, s45")
    a(f"s_add_u32 s44, s44, s{S_BR}")
    a(f"s_lshl_b32 s44, s44, 8")
    a(f"s_add_u32 s44, s44, 0x{WS_G:x}")
    a(f"v_lshlrev_b32 v{T}, 2, v{G.LANE}")
    a(f"buffer_store_dword v{T+1}, v{T}, s[{S_WS}:{S_WS+3}], s44 offen")
    a.label("L_g1_end")
    a("s_endpgm")

def kd(name, vgpr, sgpr=102):
    return f'''.amdhsa_kernel {name}
  .amdhsa_next_free_vgpr {vgpr}
  .amdhsa_next_free_sgpr {sgpr}
  .amdhsa_accum_offset {(vgpr+3)//4*4}
  .amdhsa_group_segment_fixed_size 0
  .amdhsa_kernarg_size 80
  .amdhsa_user_sgpr_count 2
  .amdhsa_user_sgpr_kernarg_segment_ptr 1
  .amdhsa_system_sgpr_workgroup_id_x 1
  .amdhsa_float_denorm_mode_32 3
.end_amdhsa_kernel
'''

def build_file(kernels):
    out = []
    if len(kernels) == 1:
        n, a, g, b, l, v = kernels[0]
        out.append(f"; @launch grid=({g},1,1) block=({b},1,1) lds={l}")
    else:
        for n, a, g, b, l, v in kernels:
            out.append(f"; @launch kernel={n} grid=({g},1,1) block=({b},1,1) lds={l}")
    out.append('.amdgcn_target "amdgcn-amd-amdhsa--gfx950"')
    out.append('.text')
    for n, a, g, b, l, v in kernels:
        out.append(f".globl {n}")
        out.append(".p2align 8")
        out.append(f".type {n},@function")
        out.append(a.text())
    out.append('.section .rodata,"a"')
    for n, a, g, b, l, v in kernels:
        out.append(".p2align 6")
        out.append(kd(n, v))
    return "\n".join(out)
```

```python
from gen1 import *
import gen1

NRING = 4
K2_LDS = NRING * 32768
FORCE_FALLBACK = False

class K2:
    QA = 8; QB = 16
    OA = 24; OB = 40
    LA = 56; LB = 60
    NMA = 64; NMB = 80
    SA = [96, 112]; SB = [128, 144]
    UK = [160, 176]; UV = [168, 184]
    SEL = 192; IDX = 196
    A0 = 197; A1 = 198; DM = 199; G = 200; L16 = 201; LB16 = 202
    T = 204
    NV = 220

S2_WS = 4
S2_H, S2_TB, S2_WV, S2_BR, S2_TG = 20, 21, 22, 23, 24
S2_TA, S2_TBT = 25, 26
S2_BLK, S2_M0, S2_RING, S2_CNT, S2_RN = 27, 28, 29, 30, 31
S2_N = 32

def m32(D, A, B, C):
    c = vr(C, 16) if isinstance(C, int) and C >= 0 else '0'
    return f"v_mfma_f32_32x32x16_bf16 {vr(D,16)}, {vr(A,4)}, {vr(B,4)}, {c}"
def sm32(D, A, B): return f"v_smfmac_f32_32x32x32_bf16 {vr(D,16)}, {vr(A,4)}, {vr(B,8)}, v{K2.IDX}"
def sm16(D, B): return f"v_smfmac_f32_16x16x64_bf16 {vr(D,4)}, {vr(K2.SEL,4)}, {vr(B,8)}, v{K2.IDX}"

def ids(a, T):
    a(f"s_and_b32 s40, s2, 7")
    a(f"s_lshr_b32 s41, s2, 3")
    a(f"s_and_b32 s42, s41, 3")
    a(f"s_lshl_b32 s40, s40, 2")
    a(f"s_add_u32 s{S2_H}, s40, s42")
    a(f"s_lshr_b32 s{S2_TB}, s41, 2")
    a(f"v_lshrrev_b32 v{T}, 6, v0")
    a(f"v_and_b32 v0, 63, v0")
    a(f"s_nop 0")
    a(f"v_readfirstlane_b32 s{S2_WV}, v{T}")
    a("s_nop 1")
    a(f"s_lshr_b32 s{S2_BR}, s{S2_WV}, 2")
    a(f"s_and_b32 s{S2_TG}, s{S2_WV}, 3")

def max_chain(a, dst, regs):
    regs = list(regs)
    a(f"v_max3_f32 v{dst}, v{regs[0]}, v{regs[1]}, v{regs[2]}")
    k = 3
    while k < len(regs):
        if k + 1 < len(regs):
            a(f"v_max3_f32 v{dst}, v{dst}, v{regs[k]}, v{regs[k+1]}"); k += 2
        else:
            a(f"v_max_f32 v{dst}, v{dst}, v{regs[k]}"); k += 1

def cross_half(a, op, dst, tmp):
    a(f"v_mov_b32 v{tmp}, v{dst}")
    a("s_nop 1")
    a(f"v_permlane32_swap_b32 v{dst}, v{tmp}")
    a("s_nop 1")
    a(f"{op} v{dst}, v{dst}, v{tmp}")

def consts(a):
    R = K2; T = R.T
    a(f"v_lshlrev_b32 v{R.L16}, 4, v0")
    a(f"v_mov_b32 v{R.IDX}, 0xdddddddd")
    a(f"v_bfe_u32 v{T}, v0, 2, 1")
    a(f"v_mov_b32 v{T+1}, 0x3f803f80")
    a(f"v_mul_lo_u32 v{R.SEL+2}, v{T}, v{T+1}")
    a(f"v_sub_u32 v{R.SEL}, v{T+1}, v{R.SEL+2}")
    a(f"v_mov_b32 v{R.SEL+3}, v{R.SEL+2}")
    a(f"v_mov_b32 v{R.SEL+1}, v{R.SEL}")

def finish_store(a, O, scale, P, soff, voff, srd, sc1=False):
    for r in range(16):
        a(f"v_mul_f32 v{O+r}, v{scale}, v{O+r}")
    for m in range(8):
        a(f"v_cvt_pk_bf16_f32 v{P+m}, v{O+2*m}, v{O+2*m+1}")
    for ks in range(2):
        a(f"buffer_store_dwordx4 {vr(P+4*ks,4)}, v{voff}, s[{srd}:{srd+3}], s{soff} offen offset:{ks*1024}" + (" sc1" if sc1 else ""))

class BR:
    Q = 160; KS = 168; VS = 176; KP = 184; VP = 208
    MS = 64; MP = 80
    SS = 96; SP = 112
    O = 24; L = 56
    G = 212

def battn_masks(a, noprev_sgpr_cond):
    R = K2; T = R.T; B = BR
    a(f"v_and_b32 v{T}, 31, v0")
    a(f"v_lshrrev_b32 v{T+1}, 5, v0")
    a(f"v_lshlrev_b32 v{T+1}, 3, v{T+1}")
    a(f"v_sub_u32 v{T}, v{T}, v{T+1}")
    a(f"v_mov_b32 v{T+1}, 0xff800000")
    noprev_sgpr_cond(a)
    a(f"s_lshl_b32 s44, s44, 10")
    a(f"v_add_u32 v{T+2}, s44, v{T}")
    for g0 in range(0, 16, 4):
        for r in range(g0, g0+4):
            c = 16*(r//8) + r % 8
            a(f"v_subrev_u32 v{B.MS+r}, {c}, v{T}")
        for k, r in enumerate(range(g0, g0+4)):
            a(f"v_cmp_le_u32_e64 s[{48+2*k}:{49+2*k}], 8, v{B.MS+r}")
        a("s_nop 0")
        for k, r in enumerate(range(g0, g0+4)):
            a(f"v_cndmask_b32_e64 v{B.MS+r}, 0, v{T+1}, s[{48+2*k}:{49+2*k}]")
    for g0 in (8, 12):
        for k, r in enumerate(range(g0, g0+4)):
            a(f"v_cmp_gt_i32_e64 s[{48+2*k}:{49+2*k}], v{T+2}, {r-17}")
        a("s_nop 0")
        for k, r in enumerate(range(g0, g0+4)):
            a(f"v_cndmask_b32_e64 v{B.MP+r}, 0, v{T+1}, s[{48+2*k}:{49+2*k}]")
    for r in range(8):
        a(f"v_mov_b32 v{B.MP+r}, 0")

def battn_compute(a):
    R = K2; T = R.T; B = BR
    a(m32(B.SS, B.KS, B.Q, B.MS))
    a(m32(B.SP, B.KP, B.Q, B.MP))
    a(m32(B.SS, B.KS+4, B.Q+4, B.SS))
    a(m32(B.SP, B.KP+4, B.Q+4, B.SP))
    for r in range(16): a(f"v_mov_b32 v{B.O+r}, 0")
    for r in range(4): a(f"v_mov_b32 v{B.L+r}, 0")
    a("s_nop 7")
    max_chain(a, T, [B.SS+r for r in range(16)] + [B.SP+r for r in range(8, 16)])
    cross_half(a, "v_max_f32", T, T+1)
    regs = [B.SS+r for r in range(16)] + [B.SP+r for r in range(8, 16)]
    for r in regs: a(f"v_sub_f32 v{r}, v{r}, v{T}")
    for r in regs: a(f"v_exp_f32 v{r}, v{r}")
    a("s_nop 1")
    a(sm32(B.O, B.VS, B.SS)); a(sm16(B.L, B.SS))
    a(sm32(B.O, B.VS+4, B.SS+8)); a(sm16(B.L, B.SS+8))
    a(sm32(B.O, B.VP, B.SP+8)); a(sm16(B.L, B.SP+8))

POS = [0, 3, 6, 8, 11, 14]
def phase(a, exps, mats, extra=None):
    extra = extra or {}
    k = 0
    for i, e in enumerate(exps):
        for x in extra.get(i, []): a(x)
        while k < len(mats) and POS[k + (6 - len(mats))] <= i:
            a(mats[k]); k += 1
        a(e)
    while k < len(mats):
        a(mats[k]); k += 1

def phaseA(a, c):
    R = K2
    S = R.SA[c]
    mats = [m32(R.SB[c], R.UK[c^1], R.QB, R.NMB), m32(R.SB[c], R.UK[c^1]+4, R.QB+4, R.SB[c]),
            sm32(R.OB, R.UV[c^1], R.SB[c^1]), sm16(R.LB, R.SB[c^1]),
            sm32(R.OB, R.UV[c^1]+4, R.SB[c^1]+8), sm16(R.LB, R.SB[c^1]+8)]
    phase(a, [f"v_exp_f32 v{S+r}, v{S+r}" for r in range(16)], mats)

def phaseB(a, c, reads, pre=(), with_s=True, post_dma=()):
    R = K2
    S = R.SB[c]
    mats = []
    if with_s:
        mats += [m32(R.SA[c^1], R.UK[c], R.QA, R.NMA), m32(R.SA[c^1], R.UK[c]+4, R.QA+4, R.SA[c^1])]
    mats += [sm32(R.OA, R.UV[c], R.SA[c]), sm16(R.LA, R.SA[c]),
             sm32(R.OA, R.UV[c]+4, R.SA[c]+8), sm16(R.LA, R.SA[c]+8)]
    for x in pre: a(x)
    extra = {}
    for k, rd in enumerate(reads):
        extra.setdefault(2 + 2*k, []).append(rd)
    for k, d in enumerate(post_dma):
        extra.setdefault(4 + 2*k, []).append(d)
    phase(a, [f"v_exp_f32 v{S+r}, v{S+r}" for r in range(16)], mats, extra)

def rdK(buf, areg, tile):
    return [f"ds_read_b128 {vr(K2.UK[buf]+4*ks,4)}, v{areg} offset:{tile*4096 + ks*1024}" for ks in range(2)]
def rdV(buf, areg, tile):
    return [f"ds_read_b128 {vr(K2.UV[buf]+4*s,4)}, v{areg} offset:{tile*4096 + 2048 + s*1024}" for s in range(2)]

def dma_block(a_list):
    d = [f"s_add_u32 m0, s{S2_M0}, s{S2_RN}\ns_nop 0\nbuffer_load_dwordx4 v{K2.DM}, s[{S2_WS}:{S2_WS+3}], s{S2_BLK} offen lds"]
    for j in range(1, 4):
        d.append(f"buffer_load_dwordx4 v{K2.DM}, s[{S2_WS}:{S2_WS+3}], s{S2_BLK} offen offset:{j*1024} lds")
    return d

def adv_dma(a):
    a(f"s_add_u32 s{S2_BLK}, s{S2_BLK}, 32768")
    a(f"s_add_u32 s{S2_RN}, s{S2_RN}, 32768")
    a(f"s_and_b32 s{S2_RN}, s{S2_RN}, {NRING*32768-1}")

def block_body(a, last):
    R = K2
    for i in range(4):
        c = i % 2
        phaseA(a, c)
        pre = ["s_waitcnt lgkmcnt(0)"]
        dma = []
        if i == 0: reads = rdK(c^1, R.A0, 2) + rdV(c^1, R.A0, 1)
        elif i == 1: reads = rdK(c^1, R.A0, 3) + rdV(c^1, R.A0, 2)
        elif i == 2:
            if not last:
                pre = [f"s_cmp_lt_u32 s{S2_N}, 6",
                       "s_cbranch_scc1 L_k2_w4",
                       "s_waitcnt vmcnt(0)"]
                reads = rdV(c^1, R.A0, 3) + rdK(c^1, R.A1, 0)
            else:
                reads = rdV(c^1, R.A0, 3)
        else:
            reads = [] if last else rdK(c^1, R.A1, 1) + rdV(c^1, R.A1, 0)
        if i == 2 and not last:
            for x in pre: a(x)
            a.label("L_k2_w4")
            a(f"s_waitcnt vmcnt({4*(NRING-3)}) lgkmcnt(0)")
            a("s_barrier")
            a(f"s_cmp_ge_u32 s{S2_N}, {8-(NRING-1)}")
            a("s_cbranch_scc1 L_k2_nodma")
            for x in dma_block(None): a(x)
            adv_dma(a)
            a.label("L_k2_nodma")
            phaseB(a, c, reads)
        else:
            phaseB(a, c, reads, pre=pre, with_s=not (last and i == 3))

def gen_k2(a, kname):
    R = K2; T = R.T; B = BR
    a.label(kname)
    a("s_cmp_ge_u32 s2, 256")
    a("s_cbranch_scc1 L_k2_end")
    stamp(a, 0)
    a(f"s_load_dwordx2 s[38:39], s[0:1], {KA_WS}")
    ids(a, T)
    consts(a)
    a(f"s_lshl_b32 s44, s{S2_TB}, 3")
    a(f"s_lshl_b32 s45, s{S2_TG}, 1")
    a(f"s_add_u32 s44, s44, s45")
    a(f"s_add_u32 s{S2_TA}, s44, s{S2_BR}")
    a(f"s_xor_b32 s45, s{S2_BR}, 1")
    a(f"s_add_u32 s{S2_TBT}, s44, s45")
    a("s_waitcnt lgkmcnt(0)")
    srd(a, S2_WS, 38, WS_SIZE)
    W = f"s[{S2_WS}:{S2_WS+3}]"
    a(f"s_add_u32 s44, s{S2_H}, 32")
    a(f"s_lshl_b32 s44, s44, 6")
    a(f"s_add_u32 s45, s44, s{S2_TA}")
    a(f"s_lshl_b32 s46, s45, 11")
    a(f"s_lshl_b32 s47, s45, 12")
    a(f"s_add_u32 s47, s47, 0x{WS_KV:x}")
    a(f"s_and_b32 s48, s{S2_TA}, 3")
    a(f"s_cmp_eq_u32 s48, 0")
    a(f"s_cselect_b32 s49, 5, 1")
    a(f"s_cmp_lt_u32 s{S2_TA}, 8")
    a(f"s_cselect_b32 s50, 1, 0")
    a(f"s_cmp_eq_u32 s48, 0")
    a(f"s_cselect_b32 s50, s50, 0")
    a(f"s_cmp_eq_u32 s50, 1")
    a(f"s_cselect_b32 s49, 0, s49")
    a(f"s_lshl_b32 s49, s49, 12")
    a(f"s_sub_u32 s49, s47, s49")
    a(f"s_mov_b32 s56, s50")
    for ks in range(2): a(f"buffer_load_dwordx4 {vr(B.Q+4*ks,4)}, v{R.L16}, {W}, s46 offen offset:{ks*1024}")
    for ks in range(2): a(f"buffer_load_dwordx4 {vr(B.KS+4*ks,4)}, v{R.L16}, {W}, s47 offen offset:{ks*1024}")
    for ks in range(2): a(f"buffer_load_dwordx4 {vr(B.KP+4*ks,4)}, v{R.L16}, {W}, s49 offen offset:{ks*1024}")
    for ks in range(2): a(f"buffer_load_dwordx4 {vr(B.VS+4*ks,4)}, v{R.L16}, {W}, s47 offen offset:{2048+ks*1024}")
    a(f"buffer_load_dwordx4 {vr(B.VP,4)}, v{R.L16}, {W}, s49 offen offset:3072")
    a(f"s_lshl_b32 s51, s{S2_TA}, 8")
    a(f"s_add_u32 s51, s51, 0x{WS_G:x}")
    a(f"v_lshlrev_b32 v{T}, 2, v0")
    a(f"buffer_load_dword v{R.G}, v{T}, {W}, s51 offen")
    a(f"s_lshl_b32 s44, s{S2_H}, 6")
    a(f"s_add_u32 s45, s44, s{S2_TA}")
    a(f"s_lshl_b32 s45, s45, 11")
    a(f"s_add_u32 s46, s44, s{S2_TBT}")
    a(f"s_lshl_b32 s46, s46, 11")
    for ks in range(2): a(f"buffer_load_dwordx4 {vr(R.QA+4*ks,4)}, v{R.L16}, {W}, s45 offen offset:{ks*1024}")
    for ks in range(2): a(f"buffer_load_dwordx4 {vr(R.QB+4*ks,4)}, v{R.L16}, {W}, s46 offen offset:{ks*1024}")
    a(f"s_lshl_b32 s44, s{S2_WV}, 12")
    a(f"s_mov_b32 s{S2_M0}, s44")
    a(f"v_add_u32 v{R.DM}, s44, v{R.L16}")
    a(f"s_lshl_b32 s{S2_BLK}, s{S2_H}, 18")
    a(f"s_add_u32 s{S2_BLK}, s{S2_BLK}, 0x{WS_KV:x}")
    a(f"s_mov_b32 s{S2_RN}, 0")
    for n in range(NRING-1):
        for x in dma_block(None): a(x)
        adv_dma(a)
    nd = 4*(NRING-1)
    battn_masks(a, lambda a: a("s_mov_b32 s44, s56"))
    a(f"s_waitcnt vmcnt({nd+5})")
    stamp(a, 1)
    battn_compute(a)
    a(f"s_waitcnt vmcnt({nd+4})")
    a(f"v_sub_f32 v{T+2}, 1.0, v{R.G}")
    a("s_nop 7")
    a(f"v_rcp_f32 v{T+3}, v{B.L}")
    a("s_nop 0")
    a(f"v_mul_f32 v{T+2}, v{T+2}, v{T+3}")
    a(f"s_lshl_b32 s44, s{S2_TA}, 6")
    a(f"s_add_u32 s44, s44, s{S2_H}")
    a(f"s_add_u32 s45, s44, 32")
    a(f"s_lshl_b32 s45, s45, 11")
    a(f"s_add_u32 s45, s45, 0x{WS_O:x}")
    a(f"s_lshl_b32 s57, s44, 11")
    a(f"s_add_u32 s57, s57, 0x{WS_O:x}")
    a("s_nop 3")
    finish_store(a, B.O, T+2, B.SS, 45, R.L16, S2_WS)
    a(f"s_lshl_b32 s44, s{S2_BR}, 14")
    a(f"v_add_u32 v{R.LB16}, s44, v{R.L16}")
    a(f"v_mov_b32 v{R.A0}, v{R.LB16}")
    a(f"v_add_u32 v{R.A1}, 32768, v{R.LB16}")
    a(f"s_mov_b32 s{S2_RING}, 32768")
    a(f"s_waitcnt vmcnt({nd-4+2})")
    a("s_barrier")
    stamp(a, 2)
    for x in rdK(0, R.L16, 0): a(x)
    for x in rdK(1, R.A0, 0): a(x)
    for r in range(16):
        a(f"v_mov_b32 v{R.OA+r}, 0"); a(f"v_mov_b32 v{R.OB+r}, 0"); a(f"v_mov_b32 v{R.SB[1]+r}, 0")
    for r in range(4):
        a(f"v_mov_b32 v{R.LA+r}, 0"); a(f"v_mov_b32 v{R.LB+r}, 0")
    for r in range(8): a(f"v_mov_b32 v{R.UV[1]+r}, 0")
    a("s_waitcnt lgkmcnt(2)")
    a(m32(R.SA[1], R.UK[0], R.QA, -1)); a(m32(R.SB[0], R.UK[0], R.QB, -1))
    a(m32(R.SA[1], R.UK[0]+4, R.QA+4, R.SA[1])); a(m32(R.SB[0], R.UK[0]+4, R.QB+4, R.SB[0]))
    a("s_nop 7"); a("s_nop 3")
    max_chain(a, T, [R.SA[1]+r for r in range(16)])
    max_chain(a, T+2, [R.SB[0]+r for r in range(16)])
    cross_half(a, "v_max_f32", T, T+1)
    cross_half(a, "v_max_f32", T+2, T+3)
    for r in range(16):
        a(f"v_sub_f32 v{R.NMA+r}, 0, v{T}"); a(f"v_sub_f32 v{R.NMB+r}, 0, v{T+2}")
    a("s_waitcnt lgkmcnt(0)")
    for x in rdK(0, R.A0, 1) + rdV(0, R.A0, 0): a(x)
    a(m32(R.SA[0], R.UK[1], R.QA, R.NMA)); a(m32(R.SA[0], R.UK[1]+4, R.QA+4, R.SA[0]))
    a(f"s_mov_b32 s{S2_N}, 0")
    a("s_nop 7"); a("s_nop 3")
    stamp(a, 3)
    a.label("L_k2_loop")
    block_body(a, last=False)
    a(f"v_mov_b32 v{R.A0}, v{R.A1}")
    a(f"s_add_u32 s{S2_RING}, s{S2_RING}, 32768")
    a(f"s_and_b32 s{S2_RING}, s{S2_RING}, {NRING*32768-1}")
    a(f"v_add_u32 v{R.A1}, s{S2_RING}, v{R.LB16}")
    a(f"s_add_u32 s{S2_N}, s{S2_N}, 1")
    a(f"s_cmp_lt_u32 s{S2_N}, 7")
    a("s_cbranch_scc1 L_k2_loop")
    block_body(a, last=True)
    stamp(a, 4)
    a("s_nop 1")
    a(sm32(R.OB, R.UV[1], R.SB[1])); a(sm16(R.LB, R.SB[1]))
    a(sm32(R.OB, R.UV[1]+4, R.SB[1]+8)); a(sm16(R.LB, R.SB[1]+8))
    a(f"s_mul_i32 s44, s{S2_WV}, 5120")
    a(f"v_add_u32 v{T}, s44, v{R.L16}")
    a(f"s_xor_b32 s45, s{S2_WV}, 4")
    a(f"s_mul_i32 s45, s45, 5120")
    a(f"v_add_u32 v{T+1}, s45, v{R.L16}")
    a("s_nop 7"); a("s_nop 3")
    for q in range(4):
        a(f"ds_write_b128 v{T}, {vr(R.OB+4*q,4)} offset:{q*1024}")
    a(f"ds_write_b128 v{T}, {vr(R.LB,4)} offset:4096")
    a("s_waitcnt lgkmcnt(0)")
    a("s_barrier")
    for q in range(4):
        a(f"ds_read_b128 {vr(R.SA[0]+4*q,4)}, v{T+1} offset:{q*1024}")
    a(f"ds_read_b128 {vr(R.SB[0],4)}, v{T+1} offset:4096")
    a("s_waitcnt lgkmcnt(0)")
    for r in range(16): a(f"v_add_f32 v{R.OA+r}, v{R.OA+r}, v{R.SA[0]+r}")
    a(f"v_add_f32 v{R.LA}, v{R.LA}, v{R.SB[0]}")
    a(f"v_mov_b32 v{T+2}, 0")
    for r in range(16): a(f"v_fma_f32 v{T+2}, v{R.OA+r}, 0, v{T+2}")
    a(f"v_add_f32 v{T+2}, v{T+2}, v{R.LA}")
    a(f"s_mov_b32 s44, 0x{f2u(2.0**40 if not FORCE_FALLBACK else -1.0):x}")
    a(f"v_cmp_nlt_f32 vcc, v{T+2}, s44")
    a("s_nop 4")
    a("s_cbranch_vccz L_k2_fin")
    gen_fallback(a)
    a.label("L_k2_fin")
    a(f"v_rcp_f32 v{T+3}, v{R.LA}")
    a("s_nop 0")
    a(f"v_mul_f32 v{T+2}, v{R.G}, v{T+3}")
    finish_store(a, R.OA, T+2, R.SA[0], 57, R.L16, S2_WS)
    if gen1.STAMPS:
        a("s_waitcnt vmcnt(0)")
        stamp(a, 5)
        stamp_flush(a, 6, S2_WS, T+4, S2_WV, 'k2', 1)
    a.label("L_k2_end")
    a("s_endpgm")

def gen_fallback(a):
    R = K2; T = R.T
    W = f"s[{S2_WS}:{S2_WS+3}]"
    M, L, AL, TM, TT = T+4, T+5, T+6, T+7, T+8
    S = R.SA[0]
    for r in range(16): a(f"v_mov_b32 v{R.OA+r}, 0")
    a(f"v_mov_b32 v{M}, 0xff800000")
    a(f"v_mov_b32 v{L}, 0")
    a(f"s_lshl_b32 s44, s{S2_H}, 18")
    a(f"s_add_u32 s44, s44, 0x{WS_KV:x}")
    a("s_mov_b32 s45, 64")
    a.label("L_k2_fb")
    for ks in range(2): a(f"buffer_load_dwordx4 {vr(R.UK[0]+4*ks,4)}, v{R.L16}, {W}, s44 offen offset:{ks*1024}")
    for s in range(2): a(f"buffer_load_dwordx4 {vr(R.UV[0]+4*s,4)}, v{R.L16}, {W}, s44 offen offset:{2048+s*1024}")
    a("s_waitcnt vmcnt(0)")
    a(m32(S, R.UK[0], R.QA, -1)); a(m32(S, R.UK[0]+4, R.QA+4, S))
    a("s_nop 7"); a("s_nop 3")
    max_chain(a, TM, [S+r for r in range(16)])
    cross_half(a, "v_max_f32", TM, TT)
    a(f"v_max_f32 v{TM}, v{TM}, v{M}")
    a(f"v_sub_f32 v{AL}, v{M}, v{TM}")
    a(f"v_exp_f32 v{AL}, v{AL}")
    a(f"v_mov_b32 v{M}, v{TM}")
    for r in range(16): a(f"v_sub_f32 v{S+r}, v{S+r}, v{M}")
    for r in range(16): a(f"v_exp_f32 v{S+r}, v{S+r}")
    a(f"v_mul_f32 v{L}, v{L}, v{AL}")
    for r in range(16):
        a(f"v_and_b32 v{TT}, 0xffff0000, v{S+r}")
        a(f"v_add_f32 v{L}, v{L}, v{TT}")
    for r in range(16): a(f"v_mul_f32 v{R.OA+r}, v{R.OA+r}, v{AL}")
    a("s_nop 1")
    a(sm32(R.OA, R.UV[0], S)); a(sm32(R.OA, R.UV[0]+4, S+8))
    a("s_add_u32 s44, s44, 4096")
    a("s_sub_u32 s45, s45, 1")
    a("s_cmp_lg_u32 s45, 0")
    a("s_nop 7"); a("s_nop 7")
    a("s_cbranch_scc1 L_k2_fb")
    cross_half(a, "v_add_f32", L, TT)
    a(f"v_mov_b32 v{R.LA}, v{L}")
```

```python
from gen2 import *
import gen1

K3_LDS = 4 * 32768
class K3:
    ACC = 0
    OF = 32
    WF = 160
    RA = 176
    DV = 180
    L16 = 184
    OV = 185
    T = 186
    NV = 200
S3_O, S3_W, S3_OUT = 4, 8, 12
S3_MT, S3_NT, S3_WV, S3_KH, S3_TG, S3_M0, S3_OB, S3_WB = 20, 21, 22, 23, 24, 25, 26, 27

class VMQ:
    def __init__(self): self.q = []
    def issue(self, tag): self.q.append(tag)
    def wait(self, tag):
        idx = max(i for i, t in enumerate(self.q) if t == tag)
        n = len(self.q) - 1 - idx
        self.q = self.q[idx+1:]
        return n

def gen_k3(a, kname):
    R = K3; T = R.T
    a.label(kname)
    a("s_cmp_ge_u32 s2, 256")
    a("s_cbranch_scc1 L_k3_end")
    stamp(a, 0)
    a(f"s_load_dwordx2 s[30:31], s[0:1], {KA_WOA}")
    a(f"s_load_dwordx2 s[32:33], s[0:1], {KA_WOB}")
    a(f"s_load_dwordx2 s[34:35], s[0:1], {KA_OUT}")
    a(f"s_load_dwordx2 s[38:39], s[0:1], {KA_WS}")
    a("s_and_b32 s40, s2, 7")
    a("s_lshr_b32 s41, s2, 3")
    a("s_lshr_b32 s42, s40, 1")
    a("s_lshl_b32 s42, s42, 2")
    a("s_and_b32 s43, s41, 3")
    a(f"s_add_u32 s{S3_MT}, s42, s43")
    a("s_and_b32 s42, s40, 1")
    a("s_lshl_b32 s42, s42, 3")
    a("s_lshr_b32 s43, s41, 2")
    a(f"s_add_u32 s{S3_NT}, s42, s43")
    a(f"v_lshrrev_b32 v{T}, 6, v0")
    a(f"v_and_b32 v0, 63, v0")
    a("s_nop 0")
    a(f"v_readfirstlane_b32 s{S3_WV}, v{T}")
    a("s_nop 1")
    a(f"s_lshr_b32 s{S3_KH}, s{S3_WV}, 2")
    a(f"s_and_b32 s{S3_TG}, s{S3_WV}, 3")
    a(f"v_lshlrev_b32 v{R.L16}, 4, v0")
    a(f"s_lshl_b32 s44, s{S3_MT}, 2")
    a(f"s_add_u32 s44, s44, s{S3_TG}")
    a(f"s_lshl_b32 s44, s44, 1")
    a(f"s_add_u32 s44, s44, s{S3_KH}")
    a(f"s_lshl_b32 s44, s44, 16")
    a(f"s_add_u32 s{S3_OB}, s44, 0x{WS_O:x}")
    a(f"v_lshrrev_b32 v{T}, 2, v0")
    a(f"v_lshlrev_b32 v{T}, 11, v{T}")
    a(f"v_and_b32 v{T+1}, 3, v0")
    a(f"v_lshlrev_b32 v{T+1}, 4, v{T+1}")
    a(f"s_lshl_b32 s44, s{S3_NT}, 7")
    a(f"v_add3_u32 v{R.DV}, v{T}, v{T+1}, s44")
    a(f"v_add_u32 v{R.DV+1}, 32768, v{R.DV}")
    a(f"v_add_u32 v{R.DV+2}, 64, v{R.DV}")
    a(f"v_add_u32 v{R.DV+3}, 32768+64, v{R.DV}")
    a(f"s_lshl_b32 s{S3_WB}, s{S3_TG}, 16")
    a(f"s_lshl_b32 s44, s{S3_KH}, 14")
    a(f"s_lshl_b32 s45, s{S3_TG}, 11")
    a(f"s_add_u32 s{S3_M0}, s44, s45")
    a(f"v_lshrrev_b32 v{T}, 5, v0")
    a(f"v_lshlrev_b32 v{T}, 8, v{T}")
    a(f"v_bfe_u32 v{T+1}, v0, 2, 2")
    a(f"v_lshlrev_b32 v{T+1}, 6, v{T+1}")
    a(f"v_bfe_u32 v{T+2}, v0, 4, 1")
    a(f"v_lshlrev_b32 v{T+2}, 5, v{T+2}")
    a(f"v_add3_u32 v{T}, v{T}, v{T+1}, v{T+2}")
    a(f"v_and_b32 v{T+1}, 3, v0")
    a(f"v_lshlrev_b32 v{T+1}, 3, v{T+1}")
    a(f"s_mul_i32 s44, s{S3_KH}, 16384+8192")
    a(f"v_add3_u32 v{R.RA}, v{T}, v{T+1}, s44")
    a(f"v_add_u32 v{R.RA+1}, 65536, v{R.RA}")
    a(f"v_xor_b32 v{R.RA+2}, 8192, v{R.RA}")
    a(f"v_add_u32 v{R.RA+3}, 65536, v{R.RA+2}")
    a(f"v_and_b32 v{R.OV}, 31, v0")
    a(f"v_lshlrev_b32 v{R.OV}, 12, v{R.OV}")
    a(f"v_lshrrev_b32 v{T+3}, 5, v0")
    a(f"v_lshlrev_b32 v{T+3}, 4, v{T+3}")
    a(f"v_add_u32 v{R.OV}, v{R.OV}, v{T+3}")
    a("s_waitcnt lgkmcnt(0)")
    srd(a, S3_O, 38, WS_SIZE)
    a(f"s_cmp_eq_u32 s{S3_KH}, 0")
    a(f"s_cselect_b32 s{S3_W}, s30, s32")
    a(f"s_cselect_b32 s{S3_W+1}, s31, s33")
    a(f"s_mov_b32 s{S3_W+2}, 0x{1024*2048:x}")
    a(f"s_mov_b32 s{S3_W+3}, 0x20000")
    srd(a, S3_OUT, 34, 2048*2048)
    q = VMQ()
    def dma(s):
        out = []
        for b in range(2):
            for hf in range(2):
                out.append(f"s_add_u32 m0, s{S3_M0}, {(s%4)*32768 + b*8192 + hf*1024}\ns_nop 0\n"
                           f"buffer_load_dwordx4 v{R.DV+2*b+hf}, s[{S3_W}:{S3_W+3}], s{S3_WB} offen lds")
        return out
    def emit_dma(s):
        for x in dma(s):
            a(x); q.issue(('w', s))
        a(f"s_add_u32 s{S3_WB}, s{S3_WB}, {128*2048}")
    def oload(s, f):
        return f"buffer_load_dwordx4 {vr(R.OF + (s%4)*32 + f*4, 4)}, v{R.L16}, s[{S3_O}:{S3_O+3}], s{S3_OB} offen offset:{(f%4)*1024}"
    def emit_o(s):
        for f in range(8):
            a(oload(s, f)); q.issue(('o', s))
            if f % 4 == 3: a(f"s_add_u32 s{S3_OB}, s{S3_OB}, 4096")
    for s in range(4):
        emit_dma(s); emit_o(s)
    for r in range(32): a(f"v_mov_b32 v{R.ACC+r}, 0")
    def reads(s, f, buf):
        hh, ks = f // 2, f % 2
        out = []
        for blk in range(2):
            reg = R.RA + 2*blk + (1 if (s % 4) >= 2 else 0)
            for tt in range(2):
                off = (s % 2)*32768 + (32*hh + 16*ks + 8*tt)*64
                out.append(f"ds_read_b64_tr_b16 {vr(R.WF + buf*8 + blk*4 + 2*tt, 2)}, v{reg} offset:{off}")
        return out
    stamp(a, 1)
    n = q.wait(('o', 0))
    a(f"s_waitcnt vmcnt({n})")
    a("s_barrier")
    stamp(a, 2)
    for x in reads(0, 0, 0): a(x)
    for s in range(8):
        for f in range(8):
            buf = f % 2
            if f == 7 and s < 7:
                n = q.wait(('o', s+1))
                a(f"s_waitcnt vmcnt({n}) lgkmcnt(0)")
                a("s_barrier")
                nxt = reads(s+1, 0, buf^1)
            else:
                a("s_waitcnt lgkmcnt(0)")
                nxt = reads(s, f+1, buf^1) if f < 7 else []
            of = R.OF + (s%4)*32 + f*4
            m = [m32(R.ACC+16*blk, R.WF + buf*8 + blk*4, of, R.ACC+16*blk) for blk in range(2)]
            a(nxt[0]) if nxt else None
            a(nxt[1]) if nxt else None
            a(m[0])
            a(nxt[2]) if nxt else None
            a(nxt[3]) if nxt else None
            a(m[1])
            if f == 7 and s + 4 < 8:
                emit_dma(s+4); emit_o(s+4)
    stamp(a, 3)
    a(f"s_lshl_b32 s44, s{S3_WV}, 12")
    a(f"v_add_u32 v{T}, s44, v{R.L16}")
    a(f"s_xor_b32 s45, s44, 16384")
    a(f"v_add_u32 v{T+1}, s45, v{R.L16}")
    a(f"s_lshr_b32 s46, s{S3_MT}, 1")
    a(f"s_lshl_b32 s46, s46, 8")
    a(f"s_and_b32 s47, s{S3_MT}, 1")
    a(f"s_add_u32 s46, s46, s47")
    a(f"s_lshl_b32 s47, s{S3_TG}, 6")
    a(f"s_add_u32 s46, s46, s47")
    a(f"s_lshl_b32 s46, s46, 11")
    a(f"s_lshl_b32 s47, s{S3_NT}, 7")
    a(f"s_add_u32 s46, s46, s47")
    a(f"s_lshl_b32 s47, s{S3_KH}, 6")
    a(f"s_add_u32 s46, s46, s47")
    a("s_nop 7")
    for qq in range(4):
        a(f"ds_write_b128 v{T}, {vr(R.ACC+16+4*qq,4)} offset:{qq*1024}")
    a("s_waitcnt lgkmcnt(0)")
    a("s_barrier")
    for qq in range(4):
        a(f"ds_read_b128 {vr(R.OF+4*qq,4)}, v{T+1} offset:{qq*1024}")
    a("s_waitcnt lgkmcnt(0)")
    for r in range(16): a(f"v_add_f32 v{R.ACC+r}, v{R.ACC+r}, v{R.OF+r}")
    P = R.OF + 16
    for m in range(8): a(f"v_cvt_pk_bf16_f32 v{P+m}, v{R.ACC+2*m}, v{R.ACC+2*m+1}")
    a("s_nop 1")
    a(f"v_permlane32_swap_b32 v{P}, v{P+2}")
    a(f"v_permlane32_swap_b32 v{P+1}, v{P+3}")
    a(f"v_permlane32_swap_b32 v{P+4}, v{P+6}")
    a(f"v_permlane32_swap_b32 v{P+5}, v{P+7}")
    a("s_nop 1")
    for qq in range(2):
        a(f"buffer_store_dwordx4 {vr(P+4*qq,4)}, v{R.OV}, s[{S3_OUT}:{S3_OUT+3}], s46 offen offset:{32*qq}")
    if gen1.STAMPS:
        stamp(a, 4)
        a("s_waitcnt vmcnt(0)")
        stamp(a, 5)
        stamp_flush(a, 6, S3_O, T+4, S3_WV, 'k3', 2)
    a.label("L_k3_end")
    a("s_endpgm")

def full3(path=None):
    ks = []
    a = Asm(); gen_gemm1(a, 'gm_qkv_kernel'); gen_gemm1_epilogue_unfused(a); e = check(a.lines)
    ks.append(('gm_qkv_kernel', a, 256, 512, G1_LDS, G1.NV))
    a = Asm(); gen_k2(a, 'gm_attn_kernel'); e += check(a.lines)
    ks.append(('gm_attn_kernel', a, 256, 512, K2_LDS, K2.NV))
    a = Asm(); gen_k3(a, 'gm_out_kernel'); e += check(a.lines)
    ks.append(('gm_out_kernel', a, 256, 512, K3_LDS, K3.NV))
    assert not e
    return ks
```

```python
from gen1 import *
import gen1

LX = 0
LW = 98304
LGW = LW + 49152
G1V2_LDS = LGW + 2048
PF_D = 5
PF_ON = True
FINE = False

class G:
    ACC = 0
    XF = 96
    WF = 112
    GF = 136
    GACC = 144
    XA = 145
    WA = 153
    GA = 154
    XD = 155
    WD = 159
    PX = 162; PW = 163
    PD = 164
    T0 = 166
    LANE = 174
    NV = 176

S_X, S_W, S_WS, S_GW = 4, 8, 12, 16
S_H, S_TB, S_WV, S_KX, S_KW, S_CNT, S_M0X, S_M0W, S_BR, S_TG = 20, 21, 22, 23, 24, 25, 26, 27, 28, 29
S_XR, S_WR, S_DX, S_DW, S_PX, S_PW = 50, 51, 52, 53, 54, 55

def acc(f, b): return G.ACC + (f*3+b)*16
def xf(buf, f): return G.XF + (buf*2+f)*4
def wf(buf, b): return G.WF + (buf*3+b)*4
def gf(buf): return G.GF + buf*4

def reads(s, buf):
    r = []
    for f in range(2):
        r.append(f"ds_read_b128 {vr(xf(buf,f),4)}, v{G.XA+f*4+s}")
    for b in range(3):
        for tt in range(2):
            r.append(f"ds_read_b64_tr_b16 {vr(wf(buf,b)+2*tt,2)}, v{G.WA} offset:{s*3072 + b*1024 + tt*256}")
    r.append(f"ds_read_b128 {vr(gf(buf),4)}, v{G.GA} offset:{s*32}")
    return r

def mfmas(buf):
    m = []
    for f in range(2):
        for b in range(3):
            A, B = (wf(buf,b), xf(buf,f)) if b < 2 else (xf(buf,f), wf(buf,b))
            m.append(f"v_mfma_f32_32x32x16_bf16 {vr(acc(f,b),16)}, {vr(A,4)}, {vr(B,4)}, {vr(acc(f,b),16)}")
    return m

def dots(buf):
    return [f"v_dot2_f32_bf16 v{G.GACC}, v{xf(buf,0)+i}, v{gf(buf)+i}, v{G.GACC}" for i in range(4)]

def dma_w():
    d = [f"s_add_u32 m0, s{S_M0W}, s{S_WR}\ns_nop 0\nbuffer_load_dwordx4 v{G.WD}, s[{S_W}:{S_W+3}], s{S_KW} offen lds"]
    for b in (1, 2):
        d.append(f"buffer_load_dwordx4 v{G.WD+b}, s[{S_W}:{S_W+3}], s{S_KW} offen offset:{b*1024} lds")
    d[-1] += f"\ns_add_u32 s{S_KW}, s{S_KW}, {64*6144}\ns_xor_b32 s{S_WR}, s{S_WR}, 24576"
    return d
def dma_x():
    d = [f"s_add_u32 m0, s{S_M0X}, s{S_XR}\ns_nop 0\nbuffer_load_dwordx4 v{G.XD}, s[{S_X}:{S_X+3}], s{S_KX} offen lds"]
    for j in (1, 2, 3):
        d.append(f"buffer_load_dwordx4 v{G.XD+j}, s[{S_X}:{S_X+3}], s{S_KX} offen offset:{j*1024} lds")
    d[-1] += (f"\ns_add_u32 s{S_KX}, s{S_KX}, 128\ns_add_u32 s{S_XR}, s{S_XR}, 32768\n"
              f"s_cmp_eq_u32 s{S_XR}, 98304\ns_cselect_b32 s{S_XR}, 0, s{S_XR}")
    return d
def pf():
    if not PF_ON: return []
    return [f"buffer_load_dword v{G.PD}, v{G.PX}, s[{S_X}:{S_X+3}], s{S_PX} offen",
            f"buffer_load_dword v{G.PD+1}, v{G.PW}, s[{S_W}:{S_W+3}], s{S_PW} offen\n"
            f"s_add_u32 s{S_PX}, s{S_PX}, 128\ns_min_u32 s{S_PX}, s{S_PX}, {15*128}\n"
            f"s_add_u32 s{S_PW}, s{S_PW}, {64*6144}\ns_min_u32 s{S_PW}, s{S_PW}, {15*64*6144}"]
NPF = lambda: 2 if PF_ON else 0

def addr_adv():
    r = [f"v_add_u32 v{G.XA+i}, s{S_DX}, v{G.XA+i}" for i in range(8)]
    r.append(f"v_add_u32 v{G.WA}, s{S_DW}, v{G.WA}")
    r.append(f"v_add_u32 v{G.GA}, 128, v{G.GA}")
    return r

SCHED = 0
NOGATE = False
def rd_order(s, buf):
    r = reads(s, buf)
    o = [r[0], r[2], r[3], r[4], r[5], r[6], r[7], r[1]]
    if not NOGATE: o.append(r[8])
    return o

def substep2(a, buf, nxt, extra, pre_wait):
    m = mfmas(buf)
    nr = 8 if NOGATE else 9
    need = [3, 5, 7, 8, 8, 8]
    per = [3, 3, 3, 0, 0, 0] if nxt else [0]*6
    issued = 0; k = 0; waited = 0
    ex = list(extra)
    for i in range(6):
        if SCHED == 2 and not pre_wait:
            if need[i] > waited:
                n = nr - need[i] + issued
                a(f"s_waitcnt lgkmcnt({min(n, 15)})"); waited = need[i]
        a(m[i])
        for _ in range(per[i]):
            if k < len(nxt): a(nxt[k]); k += 1; issued += 1
        if i >= 2:
            take = (len(ex) + (5 - i)) // (6 - i) if i < 5 else len(ex)
            for _ in range(take): a(ex.pop(0))
    if not NOGATE:
        if SCHED == 2 and not pre_wait:
            a(f"s_waitcnt lgkmcnt({min(issued, 15)})")
        for x in dots(buf): a(x)

def step(a, kind):
    if SCHED == 0: return step0(a, kind)
    for s in range(4):
        buf = s % 2
        if s < 3:
            if SCHED == 1: a("s_waitcnt lgkmcnt(0)")
            substep2(a, buf, rd_order(s+1, buf^1), addr_adv() if (s == 2 and kind != 'last') else [], False)
        else:
            nxt = []; ex = []
            pre = False
            if kind != 'last':
                n = {'loop': 4 + NPF(), 'w': 4 + NPF(), 'none': 0}[kind]
                a(f"s_waitcnt vmcnt({n}) lgkmcnt(0)")
                a("s_barrier")
                pre = True
                nxt = rd_order(0, buf^1)
                if kind in ('loop', 'w'): ex += dma_w()
                if kind == 'loop': ex += dma_x() + pf()
            elif SCHED == 1:
                a("s_waitcnt lgkmcnt(0)")
            substep2(a, buf, nxt, ex, pre)

def step0(a, kind):
    for s in range(4):
        buf = s % 2
        if s < 3:
            a("s_waitcnt lgkmcnt(0)")
            fill = reads(s+1, buf^1)
            if s == 2 and kind != 'last':
                pass
            for x in interleave(mfmas(buf), fill): a(x)
            for x in dots(buf): a(x)
            if s == 2 and kind != 'last':
                for x in addr_adv(): a(x)
        else:
            a("s_waitcnt lgkmcnt(0)")
            fill = []
            if kind != 'last':
                n = {'loop': 4 + NPF(), 'w': 4 + NPF(), 'none': 0}[kind]
                if kind == 'none': n = 0
                a(f"s_waitcnt vmcnt({n})")
                a("s_barrier")
                fill = reads(0, buf^1)
                if kind in ('loop', 'w'): fill += dma_w()
                if kind == 'loop': fill += dma_x() + pf()
            for x in interleave(mfmas(buf), fill): a(x)
            for x in dots(buf): a(x)

def gen_prologue(a, kname, endlabel):
    T = G.T0
    a.label(kname)
    a("s_cmp_ge_u32 s2, 256")
    a(f"s_cbranch_scc1 {endlabel}")
    stamp(a, 0)
    a(f"s_load_dwordx2 s[30:31], s[0:1], {KA_X}")
    a(f"s_load_dwordx2 s[32:33], s[0:1], {KA_WQA}")
    a(f"s_load_dwordx2 s[34:35], s[0:1], {KA_WQB}")
    a(f"s_load_dwordx2 s[36:37], s[0:1], {KA_GW}")
    a(f"s_load_dwordx2 s[38:39], s[0:1], {KA_WS}")
    a(f"s_and_b32 s40, s2, 7")
    a(f"s_lshr_b32 s41, s2, 3")
    a(f"s_and_b32 s42, s41, 3")
    a(f"s_lshl_b32 s40, s40, 2")
    a(f"s_add_u32 s{S_H}, s40, s42")
    a(f"s_lshr_b32 s{S_TB}, s41, 2")
    a(f"v_lshrrev_b32 v{T}, 6, v0")
    a(f"v_and_b32 v0, 63, v0")
    a(f"v_mov_b32 v{G.LANE}, v0")
    a(f"v_readfirstlane_b32 s{S_WV}, v{T}")
    a("s_nop 1")
    a(f"s_lshr_b32 s{S_BR}, s{S_WV}, 2")
    a(f"s_and_b32 s{S_TG}, s{S_WV}, 3")
    a(f"s_mov_b32 s43, s{S_TG}")
    a(f"v_lshrrev_b32 v{T}, 2, v0")
    a(f"s_lshl_b32 s44, s{S_TG}, 4")
    a(f"v_add_u32 v{T}, s44, v{T}")
    a(f"s_movk_i32 s44, 6144")
    a(f"v_mul_lo_u32 v{T}, v{T}, s44")
    a(f"v_and_b32 v{T+1}, 3, v0")
    a(f"v_lshlrev_b32 v{T+1}, 4, v{T+1}")
    a(f"s_lshl_b32 s44, s{S_H}, 6")
    a(f"v_add3_u32 v{G.WD}, v{T}, v{T+1}, s44")
    a(f"v_add_u32 v{G.WD+1}, 1024, v{G.WD}")
    a(f"v_add_u32 v{G.WD+2}, 2048, v{G.WD}")
    a(f"s_mul_i32 s44, s{S_BR}, 12288")
    a(f"s_mul_i32 s45, s{S_TG}, 3072")
    a(f"s_add_u32 s{S_M0W}, s44, s45")
    a(f"s_add_u32 s{S_M0W}, s{S_M0W}, {LW}")
    a(f"v_lshrrev_b32 v{T}, 3, v0")
    a(f"s_lshl_b32 s44, s{S_TG}, 5")
    a(f"v_add_u32 v{T}, s44, v{T}")
    a(f"v_lshlrev_b32 v{T}, 1, v{T}")
    a(f"s_lshl_b32 s44, s{S_TB}, 8")
    a(f"s_add_u32 s44, s44, s{S_BR}")
    a(f"v_add_u32 v{T}, s44, v{T}")
    a(f"v_lshlrev_b32 v{T}, 11, v{T}")
    a(f"v_and_b32 v{T+1}, 7, v0")
    a(f"v_lshrrev_b32 v{T+2}, 4, v0")
    a(f"v_xor_b32 v{T+1}, v{T+1}, v{T+2}")
    a(f"v_xor_b32 v{T+2}, 4, v{T+1}")
    a(f"v_lshlrev_b32 v{T+1}, 4, v{T+1}")
    a(f"v_lshlrev_b32 v{T+2}, 4, v{T+2}")
    for j in range(4):
        src = T+1 if j % 2 == 0 else T+2
        a(f"v_add_u32 v{G.XD+j}, v{T}, v{src}")
        if j: a(f"v_add_u32 v{G.XD+j}, {j*(16*2048 - 1024)}, v{G.XD+j}")
    a(f"s_lshl_b32 s{S_M0X}, s{S_WV}, 12")
    if FINE: stamp(a, 6)
    a("s_waitcnt lgkmcnt(0)")
    if FINE: stamp(a, 7)
    srd(a, S_X, 30, 2048*2048)
    a(f"s_cmp_eq_u32 s{S_BR}, 0")
    a(f"s_cselect_b32 s{S_W}, s32, s34")
    a(f"s_cselect_b32 s{S_W+1}, s33, s35")
    a(f"s_mov_b32 s{S_W+2}, 0x{1024*6144:x}")
    a(f"s_mov_b32 s{S_W+3}, 0x20000")
    for s_ in (S_KX, S_KW, S_XR, S_WR): a(f"s_mov_b32 s{s_}, 0")
    for x in dma_w() + dma_x(): a(x)
    srd(a, S_GW, 36, 2048)
    srd(a, S_WS, 38, WS_SIZE)
    a(f"s_cmp_ge_u32 s{S_WV}, 2")
    a("s_cbranch_scc1 L_g1_nogate")
    a(f"v_lshlrev_b32 v{T}, 4, v0")
    a(f"s_lshl_b32 s44, s{S_WV}, 10")
    a(f"s_add_u32 m0, s44, {LGW}")
    a("s_nop 0")
    a(f"buffer_load_dwordx4 v{T}, s[{S_GW}:{S_GW+3}], s44 offen lds")
    a.label("L_g1_nogate")
    for x in dma_w() + dma_x() + dma_x(): a(x)
    if FINE: stamp(a, 8)
    if PF_ON:
        a(f"s_lshl_b32 s44, s{S_TB}, 8")
        a(f"s_lshl_b32 s45, s42, 6")
        a(f"s_add_u32 s44, s44, s45")
        a(f"s_lshl_b32 s45, s{S_WV}, 3")
        a(f"s_add_u32 s44, s44, s45")
        a(f"v_add_u32 v{T}, s44, v0")
        a(f"v_lshlrev_b32 v{G.PX}, 11, v{T}")
        a(f"v_mov_b32 v{T+1}, 0x7fffff00")
        a(f"v_cmp_gt_u32 vcc, 8, v0")
        a(f"s_lshl_b32 s44, s{S_TB}, 3")
        a(f"s_and_b32 s45, s42, 1")
        a(f"s_lshl_b32 s45, s45, 2")
        a(f"s_add_u32 s44, s44, s45")
        a(f"s_add_u32 s44, s44, s{S_TG}")
        a(f"s_mul_i32 s44, s44, 6144")
        a(f"v_cndmask_b32 v{G.PX}, v{T+1}, v{G.PX}, vcc")
        a(f"s_lshr_b32 s45, s{S_H}, 1")
        a(f"s_lshl_b32 s45, s45, 7")
        a(f"s_add_u32 s44, s44, s45")
        a(f"v_lshlrev_b32 v{T}, 11, v0")
        a(f"v_add_u32 v{G.PW}, s44, v{T}")
        a(f"v_cmp_gt_u32 vcc, 3, v0")
        a(f"s_mov_b32 s{S_PX}, {2*128}")
        a(f"s_mov_b32 s{S_PW}, {2*64*6144}")
        a(f"v_cndmask_b32 v{G.PW}, v{T+1}, v{G.PW}, vcc")
        for u in range(2, PF_D):
            for x in pf(): a(x)
    if FINE: stamp(a, 9)
    a(f"v_and_b32 v{T}, 31, v0")
    a(f"v_lshrrev_b32 v{T+1}, 5, v0")
    a(f"v_lshrrev_b32 v{T+2}, 1, v{T}")
    a(f"v_and_b32 v{T+2}, 7, v{T+2}")
    a(f"v_xor_b32 v{T+1}, v{T+1}, v{T+2}")
    a(f"v_lshlrev_b32 v{T+1}, 4, v{T+1}")
    a(f"v_lshlrev_b32 v{T}, 7, v{T}")
    a(f"v_add_u32 v{T}, v{T}, v{T+1}")
    a(f"s_lshl_b32 s44, s{S_TG}, 13")
    a(f"v_add_u32 v{T}, s44, v{T}")
    a(f"s_lshl_b32 s44, s{S_BR}, 12")
    a(f"s_xor_b32 s45, s44, 4096")
    for s in range(4):
        a(f"v_xor_b32 v{T+1}, {32*s}, v{T}")
        a(f"v_add_u32 v{G.XA+s}, s44, v{T+1}")
        a(f"v_add_u32 v{G.XA+4+s}, s45, v{T+1}")
    a(f"v_lshrrev_b32 v{T}, 5, v0")
    a(f"v_lshlrev_b32 v{T}, 9, v{T}")
    a(f"v_bfe_u32 v{T+1}, v0, 2, 2")
    a(f"v_lshlrev_b32 v{T+1}, 6, v{T+1}")
    a(f"v_bfe_u32 v{T+2}, v0, 4, 1")
    a(f"v_lshlrev_b32 v{T+2}, 5, v{T+2}")
    a(f"v_add3_u32 v{T}, v{T}, v{T+1}, v{T+2}")
    a(f"v_and_b32 v{T+1}, 3, v0")
    a(f"v_lshlrev_b32 v{T+1}, 3, v{T+1}")
    a(f"s_mul_i32 s44, s{S_BR}, 12288")
    a(f"s_add_u32 s44, s44, {LW}")
    a(f"v_add3_u32 v{G.WA}, v{T}, v{T+1}, s44")
    a(f"v_lshrrev_b32 v{T}, 5, v0")
    a(f"v_lshlrev_b32 v{T}, 4, v{T}")
    a(f"v_add_u32 v{G.GA}, {LGW}, v{T}")
    for r in range(96): a(f"v_mov_b32 v{G.ACC+r}, 0")
    a(f"v_mov_b32 v{G.GACC}, 0")
    a(f"s_mov_b32 s{S_DX}, 32768")
    a(f"s_mov_b32 s{S_DW}, 24576")
    a(f"s_mov_b32 s56, 0")
    a(f"s_mov_b32 s57, 0x{(-65536) & 0xffffffff:x}")
    a(f"s_mov_b32 s58, 32768")
    stamp(a, 1)
    npf = (PF_D - 2) * NPF()
    a(f"s_waitcnt vmcnt({3 + 4 + 4 + npf})")
    a("s_barrier")
    stamp(a, 2)
    for x in (reads(0, 0) if SCHED == 0 else rd_order(0, 0)): a(x)

def gen_mainloop(a):
    a(f"s_mov_b32 s{S_CNT}, 13")
    a.label("L_g1_loop")
    step(a, 'loop')
    adv_deltas(a)
    a(f"s_sub_u32 s{S_CNT}, s{S_CNT}, 1")
    a(f"s_cmp_lg_u32 s{S_CNT}, 0")
    a("s_cbranch_scc1 L_g1_loop")
    step(a, 'w'); adv_deltas(a)
    step(a, 'none')
    step(a, 'last')
    stamp(a, 3)

def adv_deltas(a):
    a(f"s_add_u32 s56, s56, 1")
    a(f"s_cmp_eq_u32 s56, 3")
    a(f"s_cselect_b32 s56, 0, s56")
    a(f"s_cmp_eq_u32 s56, 2")
    a(f"s_cselect_b32 s{S_DX}, s57, s58")
    a(f"s_sub_u32 s{S_DW}, 0, s{S_DW}")
```

```python
import sys
from hx import *
import gen1, gen2, gen3, gen4
from gen3 import *
import mkfile
def full3b(sched=2):
    ks = []
    gen4.SCHED = sched
    a = Asm(); gen4.gen_prologue(a, 'gm_qkv_kernel', 'L_g1_end'); gen4.gen_mainloop(a)
    gen1.G1.T0 = gen4.G.T0; gen1.G1.LANE = gen4.G.LANE
    gen1.gen_gemm1_epilogue_unfused(a); e = check(a.lines)
    ks.append(('gm_qkv_kernel', a, 256, 512, gen4.G1V2_LDS, gen1.G1.NV))
    a = Asm(); gen_k2(a, 'gm_attn_kernel'); e += check(a.lines)
    ks.append(('gm_attn_kernel', a, 256, 512, K2_LDS, K2.NV))
    a = Asm(); gen_k3(a, 'gm_out_kernel'); e += check(a.lines)
    ks.append(('gm_out_kernel', a, 256, 512, K3_LDS, K3.NV))
    assert not e
    return ks
if __name__ == '__main__':
    mkfile.write(full3b(), 'v3b.s')
```

```python
from asmlib import *
import math, struct
import gen1
from gen1 import f2u, kd, build_file, interleave, QSCALE, NAME

KA_X, KA_WQA, KA_WOA, KA_BX, KA_WQB, KA_WOB, KA_GW, KA_OUT, KA_DBG, KA_WS = [8*i for i in range(10)]
P_X, P_WQA, P_WOA, P_BX, P_WQB, P_WOB, P_GW, P_OUT, P_DBG, P_WS = [32 + 2*i for i in range(10)]
WS_SIZE = 268435456
WS_KV   = 0
WS_O    = 8 << 20
WS_HALO = 16 << 20
WS_G    = 18 << 20
WS_F1   = WS_G + 0x10000
WS_F2   = WS_G + 0x20000
WS_F3   = WS_G + 0x30000
WS_T    = 48 << 20
LDS_SIZE = 163840
SPIN_MAX = 1 << 15

S_A, S_B, S_WS, S_C = 4, 8, 12, 16
S_H, S_TB, S_WV, S_BR, S_TG, S_HH, S_NONCE, S_CNT = 20, 21, 22, 23, 24, 25, 26, 27
S_M0X, S_M0W, S_KX, S_KW = 28, 29, 30, 31
S_XR, S_WR, S_DX, S_DW, S_PX, S_PW, S_XI, S_CNEG = 52, 53, 54, 55, 56, 57, 58, 59
ST = 60
V_LANE, V_L16, V_ONE = 255, 254, 253

STAMPS = False
S_ST = 72
NST = 12
def stamp(a, i):
    if not STAMPS: return
    a("s_memtime s[96:97]"); a("s_memrealtime s[98:99]"); a("s_waitcnt lgkmcnt(0)")
    a(f"s_mov_b32 s{S_ST+2*i}, s96"); a(f"s_mov_b32 s{S_ST+2*i+1}, s98")
def stamp_flush(a, vt):
    if not STAMPS: return
    a(f"s_cmp_lg_u32 s{S_WV}, 0")
    a(f"s_cbranch_scc1 L_st_skip")
    a(f"s_lshl_b32 s96, s2, 7")
    a(f"s_add_u32 s96, s96, 0x{WS_T:x}")
    a(f"v_mov_b32 v{vt+1}, 0")
    for i in range(2*NST):
        a(f"v_mov_b32 v{vt}, s{S_ST+i}")
        a(f"buffer_store_dword v{vt}, v{vt+1}, s[{S_WS}:{S_WS+3}], s96 offen offset:{4*i}")
    a.label("L_st_skip")

def srd(a, s, ptr, size):
    a(f"s_mov_b32 s{s}, s{ptr}"); a(f"s_mov_b32 s{s+1}, s{ptr+1}")
    a(f"s_mov_b32 s{s+2}, 0x{size:x}"); a(f"s_mov_b32 s{s+3}, 0x20000")
def SR(s): return f"s[{s}:{s+3}]"

def m32(D, A, B, C):
    c = vr(C, 16) if C is not None else '0'
    return f"v_mfma_f32_32x32x16_bf16 {vr(D,16)}, {vr(A,4)}, {vr(B,4)}, {c}"

class VMQ:
    def __init__(self): self.q = []
    def issue(self, tag, n=1): self.q += [tag]*n
    def wait(self, tag):
        idx = max(i for i, t in enumerate(self.q) if t == tag)
        n = len(self.q) - 1 - idx
        self.q = self.q[idx+1:]
        return n

LX = 0; LW = 98304
PF_D = 5
class G:
    ACC = 0; XF = 96; WF = 112
    XA = 136; WA = 144; XD = 145; WD = 149; PX = 152; PW = 153; PD = 154
    GX = 156; GWV = 164
    GO = 172
    T = 174
def acc(f, b): return G.ACC + (f*3+b)*16
def xf(buf, f): return G.XF + (buf*2+f)*4
def wf(buf, b): return G.WF + (buf*3+b)*4

def g1_reads(s, buf):
    X = [f"ds_read_b128 {vr(xf(buf,f),4)}, v{G.XA+f*4+s}" for f in range(2)]
    W = [f"ds_read_b64_tr_b16 {vr(wf(buf,b)+2*tt,2)}, v{G.WA} offset:{s*3072 + b*1024 + tt*256}" for b in range(3) for tt in range(2)]
    return [X[0]] + W + [X[1]]
def g1_mfmas(buf):
    m = []
    for f in range(2):
        for b in range(3):
            A, B = (wf(buf,b), xf(buf,f)) if b < 2 else (xf(buf,f), wf(buf,b))
            m.append(m32(acc(f,b), A, B, acc(f,b)))
    return m
def dma_w():
    d = [f"s_add_u32 m0, s{S_M0W}, s{S_WR}\ns_nop 0\nbuffer_load_dwordx4 v{G.WD}, {SR(S_B)}, s{S_KW} offen lds"]
    for b in (1, 2): d.append(f"buffer_load_dwordx4 v{G.WD+b}, {SR(S_B)}, s{S_KW} offen offset:{b*1024} lds")
    d[-1] += f"\ns_add_u32 s{S_KW}, s{S_KW}, {64*6144}\ns_xor_b32 s{S_WR}, s{S_WR}, 24576"
    return d
def dma_x():
    d = [f"s_add_u32 m0, s{S_M0X}, s{S_XR}\ns_nop 0\nbuffer_load_dwordx4 v{G.XD}, {SR(S_A)}, s{S_KX} offen lds"]
    for j in (1, 2, 3): d.append(f"buffer_load_dwordx4 v{G.XD+j}, {SR(S_A)}, s{S_KX} offen offset:{j*1024} lds")
    d[-1] += (f"\ns_add_u32 s{S_KX}, s{S_KX}, 128\ns_add_u32 s{S_XR}, s{S_XR}, 32768\n"
              f"s_cmp_eq_u32 s{S_XR}, 98304\ns_cselect_b32 s{S_XR}, 0, s{S_XR}")
    return d
def pf():
    return [f"buffer_load_dword v{G.PD}, v{G.PX}, {SR(S_A)}, s{S_PX} offen",
            f"buffer_load_dword v{G.PD+1}, v{G.PW}, {SR(S_B)}, s{S_PW} offen\n"
            f"s_add_u32 s{S_PX}, s{S_PX}, 128\ns_min_u32 s{S_PX}, s{S_PX}, {15*128}\n"
            f"s_add_u32 s{S_PW}, s{S_PW}, {64*6144}\ns_min_u32 s{S_PW}, s{S_PW}, {15*64*6144}"]
def addr_adv():
    return [f"v_add_u32 v{G.XA+i}, s{S_DX}, v{G.XA+i}" for i in range(8)] + [f"v_add_u32 v{G.WA}, s{S_DW}, v{G.WA}"]
def adv_deltas(a):
    a(f"s_add_u32 s{S_XI}, s{S_XI}, 1")
    a(f"s_cmp_eq_u32 s{S_XI}, 3")
    a(f"s_cselect_b32 s{S_XI}, 0, s{S_XI}")
    a(f"s_cmp_eq_u32 s{S_XI}, 2")
    a(f"s_cselect_b32 s{S_DX}, s{S_CNEG}, s{ST+11}")
    a(f"s_sub_u32 s{S_DW}, 0, s{S_DW}")

def g1_substep(a, buf, nxt, extra, pre_wait):
    m = g1_mfmas(buf)
    nr = 8
    need = [3, 5, 7, 8, 8, 8]
    per = [3, 3, 2, 0, 0, 0] if nxt else [0]*6
    issued = 0; k = 0; waited = 0
    ex = list(extra)
    for i in range(6):
        if not pre_wait and need[i] > waited:
            a(f"s_waitcnt lgkmcnt({min(nr - need[i] + issued, 15)})"); waited = need[i]
        a(m[i])
        for _ in range(per[i]):
            if k < len(nxt): a(nxt[k]); k += 1; issued += 1
        if i >= 2:
            take = (len(ex) + (5 - i)) // (6 - i) if i < 5 else len(ex)
            for _ in range(take): a(ex.pop(0))

def g1_step(a, kind, early=(), post=None):
    early = list(early)
    for s in range(4):
        buf = s % 2
        if s < 3:
            ex = []
            if s < 2 and early:
                h = (len(early) + (1 - s)) // (2 - s)
                ex = early[:h]; early = early[h:]
            if s == 2 and kind != 'last': ex = addr_adv()
            g1_substep(a, buf, g1_reads(s+1, buf^1), ex, False)
        else:
            nxt = []; ex = []
            if kind == 'last':
                a("s_waitcnt lgkmcnt(0)")
                a("s_barrier")
            else:
                n = {'first': 4 + 2*(PF_D-2), 'loop': 6, 'w': 6, 'none': 0}[kind]
                a(f"s_waitcnt vmcnt({n}) lgkmcnt(0)")
                a("s_barrier")
                nxt = g1_reads(0, buf^1)
                if kind in ('first', 'loop', 'w'): ex += dma_w()
                if kind in ('first', 'loop'): ex += dma_x() + pf()
                if kind == 'none': ex += nonce_load()
            g1_substep(a, buf, nxt, ex, True)
    if post: post(a)

def nonce_load():
    return [f"buffer_load_dword v{G.PD}, v{V_ONE}, {SR(S_C)}, 0 offen sc1"]

def gate_math(a):
    T = G.T
    a(f"v_mov_b32 v{T}, 0")
    for i in range(8): a(f"v_dot2_f32_bf16 v{T}, v{G.GX+i}, v{G.GWV+i}, v{T}")
    a("s_nop 2")
    for sh in (1, 2, 4, 8):
        a("s_nop 1")
        a(f"v_add_f32_dpp v{T}, v{T}, v{T} row_shr:{sh} row_mask:0xf bank_mask:0xf bound_ctrl:0")
    a("s_nop 1")
    for k in range(4): a(f"v_readlane_b32 s{ST+k}, v{T}, {16*k+15}")
    a("s_nop 1")
    a(f"v_mov_b32 v{T}, s{ST}")
    for k in range(1, 4): a(f"v_add_f32 v{T}, s{ST+k}, v{T}")
    a(f"v_mul_f32 v{T}, 0x{f2u(-math.log2(math.e)):x}, v{T}")
    a(f"v_exp_f32 v{T}, v{T}")
    a("s_nop 0")
    a(f"v_add_f32 v{T}, 1.0, v{T}")
    a(f"v_rcp_f32 v{T}, v{T}")
    a("s_nop 0")
    a(f"buffer_store_dword v{T}, v{V_ONE}, {SR(S_WS)}, s{ST+8} offen sc1")

def gen_prologue(a, kname):
    T = G.T
    a.label(kname)
    a("s_cmp_ge_u32 s2, 256")
    a("s_cbranch_scc1 L_end")
    stamp(a, 0)
    a("s_load_dwordx16 s[32:47], s[0:1], 0")
    a("s_load_dwordx4 s[48:51], s[0:1], 64")
    a(f"s_and_b32 s{ST}, s2, 7")
    a(f"s_lshr_b32 s{ST+1}, s2, 3")
    a(f"s_and_b32 s{S_HH}, s{ST+1}, 3")
    a(f"s_lshl_b32 s{ST}, s{ST}, 2")
    a(f"s_add_u32 s{S_H}, s{ST}, s{S_HH}")
    a(f"s_lshr_b32 s{S_TB}, s{ST+1}, 2")
    a(f"v_lshrrev_b32 v{T}, 6, v0")
    a(f"v_and_b32 v{V_LANE}, 63, v0")
    a(f"v_readfirstlane_b32 s{S_WV}, v{T}")
    a(f"v_lshlrev_b32 v{V_L16}, 4, v{V_LANE}")
    a(f"v_mov_b32 v{T+1}, 0x7fffff00")
    a(f"v_cmp_eq_u32 vcc, 0, v{V_LANE}")
    a(f"s_lshr_b32 s{S_BR}, s{S_WV}, 2")
    a(f"s_and_b32 s{S_TG}, s{S_WV}, 3")
    a(f"v_cndmask_b32_e64 v{V_ONE}, v{T+1}, 0, vcc")
    L = V_LANE
    a(f"v_lshrrev_b32 v{T}, 2, v{L}")
    a(f"s_lshl_b32 s{ST}, s{S_TG}, 4")
    a(f"v_add_u32 v{T}, s{ST}, v{T}")
    a(f"s_movk_i32 s{ST}, 6144")
    a(f"v_mul_lo_u32 v{T}, v{T}, s{ST}")
    a(f"v_and_b32 v{T+1}, 3, v{L}")
    a(f"v_lshlrev_b32 v{T+1}, 4, v{T+1}")
    a(f"s_lshl_b32 s{ST}, s{S_H}, 6")
    a(f"v_add3_u32 v{G.WD}, v{T}, v{T+1}, s{ST}")
    a(f"v_add_u32 v{G.WD+1}, 1024, v{G.WD}")
    a(f"v_add_u32 v{G.WD+2}, 2048, v{G.WD}")
    a(f"s_mul_i32 s{ST}, s{S_BR}, 12288")
    a(f"s_mul_i32 s{ST+1}, s{S_TG}, 3072")
    a(f"s_add_u32 s{S_M0W}, s{ST}, s{ST+1}")
    a(f"s_add_u32 s{S_M0W}, s{S_M0W}, {LW}")
    a(f"v_lshrrev_b32 v{T}, 3, v{L}")
    a(f"s_lshl_b32 s{ST}, s{S_TG}, 5")
    a(f"v_add_u32 v{T}, s{ST}, v{T}")
    a(f"v_lshlrev_b32 v{T}, 1, v{T}")
    a(f"s_lshl_b32 s{ST}, s{S_TB}, 8")
    a(f"s_add_u32 s{ST}, s{ST}, s{S_BR}")
    a(f"v_add_u32 v{T}, s{ST}, v{T}")
    a(f"v_lshlrev_b32 v{T}, 11, v{T}")
    a(f"v_and_b32 v{T+1}, 7, v{L}")
    a(f"v_lshrrev_b32 v{T+2}, 4, v{L}")
    a(f"v_xor_b32 v{T+1}, v{T+1}, v{T+2}")
    a(f"v_xor_b32 v{T+2}, 4, v{T+1}")
    a(f"v_lshlrev_b32 v{T+1}, 4, v{T+1}")
    a(f"v_lshlrev_b32 v{T+2}, 4, v{T+2}")
    for j in range(4):
        src = T+1 if j % 2 == 0 else T+2
        a(f"v_add_u32 v{G.XD+j}, v{T}, v{src}")
        if j: a(f"v_add_u32 v{G.XD+j}, {j*(16*2048 - 1024)}, v{G.XD+j}")
    a(f"s_lshl_b32 s{S_M0X}, s{S_WV}, 12")
    for s_ in (S_KX, S_KW, S_XR, S_WR): a(f"s_mov_b32 s{s_}, 0")
    a("s_waitcnt lgkmcnt(0)")
    srd(a, S_A, P_X, 2048*2048)
    a(f"s_cmp_eq_u32 s{S_BR}, 0")
    a(f"s_cselect_b32 s{S_B}, s{P_WQA}, s{P_WQB}")
    a(f"s_cselect_b32 s{S_B+1}, s{P_WQA+1}, s{P_WQB+1}")
    a(f"s_mov_b32 s{S_B+2}, 0x{1024*6144:x}")
    a(f"s_mov_b32 s{S_B+3}, 0x20000")
    for x in dma_w() + dma_x() + dma_w() + dma_x(): a(x)
    stamp(a, 1)
    srd(a, S_WS, P_WS, WS_SIZE)
    srd(a, S_C, P_DBG, 256)
    a(f"s_or_b32 s{ST}, s2, s{S_WV}")
    a(f"s_cmp_lg_u32 s{ST}, 0")
    a("s_cbranch_scc1 L_nononce")
    a(f"s_memrealtime s[{ST}:{ST+1}]")
    a("s_waitcnt lgkmcnt(0)")
    a(f"s_or_b32 s{ST}, s{ST}, 1")
    a(f"v_mov_b32 v{T}, s{ST}")
    a(f"buffer_store_dword v{T}, v{V_ONE}, {SR(S_C)}, 0 offen sc1")
    a.label("L_nononce")
    a(f"s_lshr_b32 s{ST}, s{S_H}, 2")
    a(f"s_lshl_b32 s{ST+1}, s{S_HH}, 3")
    a(f"s_add_u32 s{ST+1}, s{ST+1}, s{S_WV}")
    a(f"s_lshl_b32 s{ST+2}, s{S_TB}, 3")
    a(f"s_add_u32 s{ST+2}, s{ST+2}, s{ST}")
    a(f"s_lshl_b32 s{ST+8}, s{ST+2}, 5")
    a(f"s_add_u32 s{ST+8}, s{ST+8}, s{ST+1}")
    a(f"s_lshl_b32 s{ST+8}, s{ST+8}, 2")
    a(f"s_add_u32 s{ST+8}, s{ST+8}, 0x{WS_G:x}")
    a(f"s_and_b32 s{ST+2}, s{ST}, 3")
    a(f"s_lshl_b32 s{ST+2}, s{ST+2}, 5")
    a(f"s_add_u32 s{ST+2}, s{ST+2}, s{ST+1}")
    a(f"s_lshl_b32 s{ST+2}, s{ST+2}, 1")
    a(f"s_lshr_b32 s{ST+3}, s{ST}, 2")
    a(f"s_add_u32 s{ST+2}, s{ST+2}, s{ST+3}")
    a(f"s_lshl_b32 s{ST+3}, s{S_TB}, 8")
    a(f"s_add_u32 s{ST+2}, s{ST+2}, s{ST+3}")
    a(f"s_lshl_b32 s{ST+2}, s{ST+2}, 11")
    a(f"s_mov_b32 s{ST+4}, s{P_GW}"); a(f"s_mov_b32 s{ST+5}, s{P_GW+1}")
    a(f"s_mov_b32 s{ST+6}, 2048"); a(f"s_mov_b32 s{ST+7}, 0x20000")
    a(f"v_lshlrev_b32 v{G.GO}, 5, v{L}")
    for q in range(2): a(f"buffer_load_dwordx4 {vr(G.GX+4*q,4)}, v{G.GO}, {SR(S_A)}, s{ST+2} offen offset:{16*q}")
    for q in range(2): a(f"buffer_load_dwordx4 {vr(G.GWV+4*q,4)}, v{G.GO}, {SR(ST+4)}, 0 offen offset:{16*q}")
    a(f"s_lshl_b32 s{ST}, s{S_TB}, 8")
    a(f"s_lshl_b32 s{ST+1}, s{S_HH}, 6")
    a(f"s_add_u32 s{ST}, s{ST}, s{ST+1}")
    a(f"s_lshl_b32 s{ST+1}, s{S_WV}, 3")
    a(f"s_add_u32 s{ST}, s{ST}, s{ST+1}")
    a(f"v_add_u32 v{T}, s{ST}, v{L}")
    a(f"v_lshlrev_b32 v{G.PX}, 11, v{T}")
    a(f"v_mov_b32 v{T+1}, 0x7fffff00")
    a(f"v_cmp_gt_u32 vcc, 8, v{L}")
    a(f"s_lshl_b32 s{ST}, s{S_TB}, 3")
    a(f"s_and_b32 s{ST+1}, s{S_HH}, 1")
    a(f"s_lshl_b32 s{ST+1}, s{ST+1}, 2")
    a(f"s_add_u32 s{ST}, s{ST}, s{ST+1}")
    a(f"s_add_u32 s{ST}, s{ST}, s{S_TG}")
    a(f"s_mul_i32 s{ST}, s{ST}, 6144")
    a(f"v_cndmask_b32 v{G.PX}, v{T+1}, v{G.PX}, vcc")
    a(f"s_lshr_b32 s{ST+1}, s{S_H}, 1")
    a(f"s_lshl_b32 s{ST+1}, s{ST+1}, 7")
    a(f"s_add_u32 s{ST}, s{ST}, s{ST+1}")
    a(f"v_lshlrev_b32 v{T}, 11, v{L}")
    a(f"v_add_u32 v{G.PW}, s{ST}, v{T}")
    a(f"v_cmp_gt_u32 vcc, 3, v{L}")
    a(f"s_mov_b32 s{S_PX}, {2*128}")
    a(f"s_mov_b32 s{S_PW}, {2*64*6144}")
    a(f"v_cndmask_b32 v{G.PW}, v{T+1}, v{G.PW}, vcc")
    a(f"v_and_b32 v{T}, 31, v{L}")
    a(f"v_lshrrev_b32 v{T+1}, 5, v{L}")
    a(f"v_lshrrev_b32 v{T+2}, 1, v{T}")
    a(f"v_and_b32 v{T+2}, 7, v{T+2}")
    a(f"v_xor_b32 v{T+1}, v{T+1}, v{T+2}")
    a(f"v_lshlrev_b32 v{T+1}, 4, v{T+1}")
    a(f"v_lshlrev_b32 v{T}, 7, v{T}")
    a(f"v_add_u32 v{T}, v{T}, v{T+1}")
    a(f"s_lshl_b32 s{ST}, s{S_TG}, 13")
    a(f"v_add_u32 v{T}, s{ST}, v{T}")
    a(f"s_lshl_b32 s{ST}, s{S_BR}, 12")
    a(f"s_xor_b32 s{ST+1}, s{ST}, 4096")
    for s in range(4):
        a(f"v_xor_b32 v{T+1}, {32*s}, v{T}")
        a(f"v_add_u32 v{G.XA+s}, s{ST}, v{T+1}")
        a(f"v_add_u32 v{G.XA+4+s}, s{ST+1}, v{T+1}")
    a(f"v_lshrrev_b32 v{T}, 5, v{L}")
    a(f"v_lshlrev_b32 v{T}, 9, v{T}")
    a(f"v_bfe_u32 v{T+1}, v{L}, 2, 2")
    a(f"v_lshlrev_b32 v{T+1}, 6, v{T+1}")
    a(f"v_bfe_u32 v{T+2}, v{L}, 4, 1")
    a(f"v_lshlrev_b32 v{T+2}, 5, v{T+2}")
    a(f"v_add3_u32 v{T}, v{T}, v{T+1}, v{T+2}")
    a(f"v_and_b32 v{T+1}, 3, v{L}")
    a(f"v_lshlrev_b32 v{T+1}, 3, v{T+1}")
    a(f"s_mul_i32 s{ST}, s{S_BR}, 12288")
    a(f"s_add_u32 s{ST}, s{ST}, {LW}")
    a(f"v_add3_u32 v{G.WA}, v{T}, v{T+1}, s{ST}")
    g2_setup_v(a, T)
    for r in range(96): a(f"v_mov_b32 v{G.ACC+r}, 0")
    a(f"s_mov_b32 s{S_DX}, 32768")
    a(f"s_mov_b32 s{S_DW}, 24576")
    a(f"s_mov_b32 s{S_XI}, 0")
    a(f"s_mov_b32 s{S_CNEG}, 0x{(-65536) & 0xffffffff:x}")
    a(f"s_mov_b32 s{ST+11}, 32768")
    stamp(a, 2)
    a("s_waitcnt vmcnt(11)")
    a("s_barrier")
    stamp(a, 3)
    for x in g1_reads(0, 0): a(x)

def gen_gemm1(a):
    early = dma_x()
    for u in range(2, PF_D): early += pf()
    g1_step(a, 'first', early, post=gate_math)
    adv_deltas(a)
    a(f"s_mov_b32 s{S_CNT}, 12")
    a.label("L_g1_loop")
    g1_step(a, 'loop')
    adv_deltas(a)
    a(f"s_sub_u32 s{S_CNT}, s{S_CNT}, 1")
    a(f"s_cmp_lg_u32 s{S_CNT}, 0")
    a("s_cbranch_scc1 L_g1_loop")
    g1_step(a, 'w'); adv_deltas(a)
    g1_step(a, 'none')
    g1_step(a, 'last')
    stamp(a, 4)

L_STASH = 98304
L_QX    = 147456
S_BO, S_KVB, S_RN, S_RING, S_N, S_M0R, S_T0, S_OBD, S_OAD, S_NOPREV, S_HALO, S_QS = 28, 29, 30, 31, 52, 53, 54, 55, 56, 57, 58, 59
class R:
    OA = 0; OB = 16; LA = 32; LB = 36; SEL = 40; IDX = 44; A0 = 45; A1 = 46; DM = 47
    NMA = 48; NMB = 64
    SA = [80, 96]; SB = [112, 144]
    QA = 128; QB = 136
    UK = [160, 176]; UV = [168, 184]
    T = 192
    KP = 208; VP = 216; LB16 = 220; PL = 221; PV_ = 222
    LP = 223
FORCE_FALLBACK = False
uid = [0]
def spin_poll(a, dst, voff, srd_, soff, tag):
    a(f"s_mov_b32 s{ST}, {SPIN_MAX}")
    a.label(f"L_poll_{tag}")
    a("s_waitcnt vmcnt(0)")
    a(f"v_cmp_ne_u32 vcc, s{S_NONCE}, v{dst}")
    a("s_nop 4")
    a(f"s_cbranch_vccz L_poll_{tag}_ok")
    a(f"s_sub_u32 s{ST}, s{ST}, 1")
    a(f"s_cmp_eq_u32 s{ST}, 0")
    a(f"s_cbranch_scc1 L_poll_{tag}_ok")
    a("s_sleep 2")
    a(f"buffer_load_dword v{dst}, v{voff}, {SR(srd_)}, s{soff} offen sc1")
    a(f"s_branch L_poll_{tag}")
    a.label(f"L_poll_{tag}_ok")

def pack(a, base, dst, scale=None):
    for m in range(8):
        if scale is not None:
            a(f"v_mul_f32 v{base+2*m}, s{scale}, v{base+2*m}")
            a(f"v_mul_f32 v{base+2*m+1}, s{scale}, v{base+2*m+1}")
        a(f"v_cvt_pk_bf16_f32 v{dst+m}, v{base+2*m}, v{base+2*m+1}")

def gen_transition(a):
    T = R.T; L = V_LANE
    W = SR(S_WS)
    a(f"s_mov_b32 s{S_QS}, 0x{f2u(QSCALE):x}")
    a(f"v_and_b32 v{T}, 0x33, v{L}")
    a(f"v_lshrrev_b32 v{T+1}, 1, v{L}")
    a(f"v_and_b32 v{T+1}, 4, v{T+1}")
    a(f"v_or_b32 v{T}, v{T}, v{T+1}")
    a(f"v_lshlrev_b32 v{T+1}, 1, v{L}")
    a(f"v_and_b32 v{T+1}, 8, v{T+1}")
    a(f"v_or_b32 v{T}, v{T}, v{T+1}")
    a(f"v_lshlrev_b32 v{R.LP}, 4, v{T}")
    a(f"s_lshl_b32 s{S_T0}, s{S_TB}, 3")
    a(f"s_lshl_b32 s{ST}, s{S_TG}, 1")
    a(f"s_add_u32 s{ST}, s{ST}, s{S_BR}")
    a(f"s_add_u32 s{S_T0}, s{S_T0}, s{ST}")
    a(f"s_lshl_b32 s{S_KVB}, s{S_H}, 18")
    if WS_KV: a(f"s_add_u32 s{S_KVB}, s{S_KVB}, 0x{WS_KV:x}")
    a(f"s_lshl_b32 s{S_OAD}, s{S_T0}, 6")
    a(f"s_add_u32 s{S_OAD}, s{S_OAD}, s{S_H}")
    a(f"s_lshl_b32 s{S_OAD}, s{S_OAD}, 11")
    a(f"s_add_u32 s{S_OAD}, s{S_OAD}, 0x{WS_O:x}")
    a(f"s_add_u32 s{S_OBD}, s{S_OAD}, {32*2048}")
    a(f"s_cmp_lg_u32 s{S_BR}, 0")
    a("s_cbranch_scc1 L_tr_b")
    a(f"s_lshl_b32 s{ST+1}, s{S_T0}, 12")
    a(f"s_add_u32 s{ST+1}, s{ST+1}, s{S_KVB}")
    a(f"s_lshl_b32 s{ST+2}, s{S_TG}, 13")
    a(f"v_add_u32 v{T}, s{ST+2}, v{R.LP}")
    a(f"v_add_u32 v{T+1}, s{ST+2}, v{V_L16}")
    a(f"s_lshl_b32 s{ST+3}, s{S_TG}, 12")
    a(f"s_add_u32 s{ST+3}, s{ST+3}, {L_QX}")
    a(f"v_add_u32 v{T+2}, s{ST+3}, v{V_L16}")
    a(f"s_add_u32 s{ST+4}, s{ST+1}, 4096")
    a("s_nop 4")
    P = 96
    for f in range(2):
        so = ST+1 if f == 0 else ST+4
        pk = P + f*16; pv = pk + 8
        pack(a, acc(f,1), pk)
        for ks in range(2):
            a(f"buffer_store_dwordx4 {vr(pk+4*ks,4)}, v{R.LP}, {W}, s{so} offen offset:{ks*1024} sc1")
        pack(a, acc(f,2), pv)
        for s in range(2):
            a(f"buffer_store_dwordx4 {vr(pv+4*s,4)}, v{V_L16}, {W}, s{so} offen offset:{2048+s*1024} sc1")
        for ks in range(2): a(f"ds_write_b128 v{T}, {vr(pk+4*ks,4)} offset:{f*4096 + ks*1024}")
        for s in range(2): a(f"ds_write_b128 v{T+1}, {vr(pv+4*s,4)} offset:{f*4096 + 2048 + s*1024}")
    for f in range(2):
        q = R.QA if f == 0 else R.QB
        pack(a, acc(f,0), q, S_QS)
        for ks in range(2): a(f"ds_write_b128 v{T+2}, {vr(q+4*ks,4)} offset:{f*2048 + ks*1024}")
    a("s_branch L_tr_join")
    a.label("L_tr_b")
    a(f"s_mul_i32 s{ST+1}, s{S_TG}, 12288")
    a(f"s_add_u32 s{ST+1}, s{ST+1}, {L_STASH}")
    a(f"v_add_u32 v{T}, s{ST+1}, v{R.LP}")
    a(f"v_add_u32 v{T+1}, s{ST+1}, v{V_L16}")
    a(f"s_lshl_b32 s{ST+2}, s{S_H}, 3")
    a(f"s_add_u32 s{ST+2}, s{ST+2}, s{S_TB}")
    a(f"s_lshl_b32 s{ST+2}, s{ST+2}, 1")
    a(f"s_lshr_b32 s{ST+3}, s{S_TG}, 1")
    a(f"s_add_u32 s{ST+2}, s{ST+2}, s{ST+3}")
    a(f"s_lshl_b32 s{ST+2}, s{ST+2}, 12")
    a(f"s_add_u32 s{ST+2}, s{ST+2}, 0x{WS_HALO:x}")
    a("s_nop 2")
    for f in range(2):
        off = 6144 if f == 0 else 0
        pk = P + f*24; pv = pk + 8; pq = pk + 16
        pack(a, acc(f,1), pk)
        pack(a, acc(f,2), pv)
        if f == 0:
            a(f"s_bitcmp1_b32 s{S_TG}, 0")
            a("s_cbranch_scc0 L_tr_nohalo")
            for ks in range(2):
                a(f"buffer_store_dwordx4 {vr(pk+4*ks,4)}, v{R.LP}, {W}, s{ST+2} offen offset:{ks*1024} sc1")
            a(f"buffer_store_dwordx4 {vr(pv+4,4)}, v{V_L16}, {W}, s{ST+2} offen offset:2048 sc1")
            a.label("L_tr_nohalo")
        for ks in range(2): a(f"ds_write_b128 v{T}, {vr(pk+4*ks,4)} offset:{off + 2048 + ks*1024}")
        for s in range(2): a(f"ds_write_b128 v{T+1}, {vr(pv+4*s,4)} offset:{off + 4096 + s*1024}")
        pack(a, acc(f,0), pq, S_QS)
        for ks in range(2): a(f"ds_write_b128 v{T+1}, {vr(pq+4*ks,4)} offset:{off + ks*1024}")
    a.label("L_tr_join")
    a("s_waitcnt vmcnt(8)")
    a(f"s_cmp_lg_u32 s{S_BR}, 0")
    a("s_cbranch_scc0 L_tr_n0")
    a("s_waitcnt vmcnt(3)")
    a(f"s_bitcmp1_b32 s{S_TG}, 0")
    a("s_cbranch_scc1 L_tr_n0")
    a("s_waitcnt vmcnt(0)")
    a.label("L_tr_n0")
    a(f"v_readfirstlane_b32 s{S_NONCE}, v{G.PD}")
    a(f"s_mov_b32 s{ST}, {SPIN_MAX}")
    a.label("L_nonce_poll")
    a(f"s_cmp_lg_u32 s{S_NONCE}, 0")
    a("s_cbranch_scc1 L_nonce_ok")
    a(f"s_sub_u32 s{ST}, s{ST}, 1")
    a(f"s_cmp_eq_u32 s{ST}, 0")
    a("s_cbranch_scc1 L_nonce_ok")
    a(f"buffer_load_dword v{G.PD}, v{V_ONE}, {SR(S_C)}, 0 offen sc1")
    a("s_waitcnt vmcnt(0)")
    a(f"v_readfirstlane_b32 s{S_NONCE}, v{G.PD}")
    a("s_branch L_nonce_poll")
    a.label("L_nonce_ok")
    g2_srds(a)
    a(f"v_mov_b32 v{R.IDX}, 0xdddddddd")
    a(f"v_bfe_u32 v{T}, v{L}, 2, 1")
    a(f"v_mov_b32 v{T+1}, 0x3f803f80")
    a(f"v_mul_lo_u32 v{R.SEL+2}, v{T}, v{T+1}")
    a(f"v_sub_u32 v{R.SEL}, v{T+1}, v{R.SEL+2}")
    a(f"v_mov_b32 v{R.SEL+3}, v{R.SEL+2}")
    a(f"v_mov_b32 v{R.SEL+1}, v{R.SEL}")
    a(f"s_lshl_b32 s{S_M0R}, s{S_WV}, 12")
    a(f"v_add_u32 v{R.DM}, s{S_M0R}, v{V_L16}")
    a(f"s_lshl_b32 s{ST}, s{S_BR}, 14")
    a(f"v_add_u32 v{R.LB16}, s{ST}, v{V_L16}")
    a(f"v_mov_b32 v{R.A0}, v{R.LB16}")
    a(f"v_add_u32 v{R.A1}, 32768, v{R.LB16}")
    a(f"s_mov_b32 s{S_RING}, 32768")
    a(f"s_add_u32 s{S_BO}, s{S_TB}, 1")
    a(f"s_and_b32 s{S_BO}, s{S_BO}, 7")
    a(f"s_lshl_b32 s{S_BO}, s{S_BO}, 15")
    a(f"s_mov_b32 s{S_RN}, 32768")
    a(f"v_lshlrev_b32 v{R.PV_}, 2, v{L}")
    a("s_waitcnt lgkmcnt(0)")
    a("s_barrier")
    stamp(a, 5)
    a(f"s_cmp_eq_u32 s{S_BR}, 0")
    a("s_cbranch_scc1 L_tr_haveq")
    a(f"s_lshl_b32 s{ST}, s{S_TG}, 12")
    a(f"s_add_u32 s{ST}, s{ST}, {L_QX}")
    a(f"v_add_u32 v{T}, s{ST}, v{V_L16}")
    for ks in range(2): a(f"ds_read_b128 {vr(R.QA+4*ks,4)}, v{T} offset:{2048 + ks*1024}")
    for ks in range(2): a(f"ds_read_b128 {vr(R.QB+4*ks,4)}, v{T} offset:{ks*1024}")
    a.label("L_tr_haveq")

def sm32(D, A, B): return f"v_smfmac_f32_32x32x32_bf16 {vr(D,16)}, {vr(A,4)}, {vr(B,8)}, v{R.IDX}"
def sm16(D, B): return f"v_smfmac_f32_16x16x64_bf16 {vr(D,4)}, {vr(R.SEL,4)}, {vr(B,8)}, v{R.IDX}"
def max_chain(a, dst, regs):
    regs = list(regs)
    a(f"v_max3_f32 v{dst}, v{regs[0]}, v{regs[1]}, v{regs[2]}")
    k = 3
    while k < len(regs):
        if k + 1 < len(regs):
            a(f"v_max3_f32 v{dst}, v{dst}, v{regs[k]}, v{regs[k+1]}"); k += 2
        else:
            a(f"v_max_f32 v{dst}, v{dst}, v{regs[k]}"); k += 1
def cross_half(a, op, dst, tmp):
    a(f"v_mov_b32 v{tmp}, v{dst}")
    a("s_nop 1")
    a(f"v_permlane32_swap_b32 v{dst}, v{tmp}")
    a("s_nop 1")
    a(f"{op} v{dst}, v{dst}, v{tmp}")

POS = [0, 3, 6, 8, 11, 14]
def phase(a, exps, mats, extra=None):
    extra = extra or {}
    k = 0
    for i, e in enumerate(exps):
        for x in extra.get(i, []): a(x)
        while k < len(mats) and POS[k + (6 - len(mats))] <= i:
            a(mats[k]); k += 1
        a(e)
    while k < len(mats):
        a(mats[k]); k += 1
def phaseA(a, c):
    S = R.SA[c]
    mats = [m32(R.SB[c], R.UK[c^1], R.QB, R.NMB), m32(R.SB[c], R.UK[c^1]+4, R.QB+4, R.SB[c]),
            sm32(R.OB, R.UV[c^1], R.SB[c^1]), sm16(R.LB, R.SB[c^1]),
            sm32(R.OB, R.UV[c^1]+4, R.SB[c^1]+8), sm16(R.LB, R.SB[c^1]+8)]
    phase(a, [f"v_exp_f32 v{S+r}, v{S+r}" for r in range(16)], mats)
def phaseB(a, c, reads, pre=(), with_s=True, fill=()):
    S = R.SB[c]
    mats = []
    if with_s:
        mats += [m32(R.SA[c^1], R.UK[c], R.QA, R.NMA), m32(R.SA[c^1], R.UK[c]+4, R.QA+4, R.SA[c^1])]
    mats += [sm32(R.OA, R.UV[c], R.SA[c]), sm16(R.LA, R.SA[c]),
             sm32(R.OA, R.UV[c]+4, R.SA[c]+8), sm16(R.LA, R.SA[c]+8)]
    for x in pre: a(x)
    extra = {}
    for k, rd in enumerate(reads): extra.setdefault(2 + 2*k, []).append(rd)
    for k, d in enumerate(fill): extra.setdefault(min(1 + 2*k, 15), []).append(d)
    phase(a, [f"v_exp_f32 v{S+r}, v{S+r}" for r in range(16)], mats, extra)
def rdK(buf, areg, tile):
    return [f"ds_read_b128 {vr(R.UK[buf]+4*ks,4)}, v{areg} offset:{tile*4096 + ks*1024}" for ks in range(2)]
def rdV(buf, areg, tile):
    return [f"ds_read_b128 {vr(R.UV[buf]+4*s,4)}, v{areg} offset:{tile*4096 + 2048 + s*1024}" for s in range(2)]

def ring_dma():
    W = SR(S_WS)
    d = [f"s_add_u32 m0, s{S_M0R}, s{S_RN}\ns_add_u32 s{ST+1}, s{S_KVB}, s{S_BO}\nbuffer_load_dwordx4 v{R.DM}, {W}, s{ST+1} offen sc1 lds"]
    for j in range(1, 4):
        d.append(f"buffer_load_dwordx4 v{R.DM}, {W}, s{ST+1} offen offset:{j*1024} sc1 lds")
    d[-1] += (f"\ns_add_u32 s{S_BO}, s{S_BO}, 32768\ns_and_b32 s{S_BO}, s{S_BO}, {8*32768-1}\n"
              f"s_add_u32 s{S_RN}, s{S_RN}, 32768\ns_cmp_eq_u32 s{S_RN}, 98304\ns_cselect_b32 s{S_RN}, 0, s{S_RN}")
    return d

def flag_store(a, off_sgpr):
    a(f"v_mov_b32 v{R.T+15}, s{S_NONCE}")
    a(f"buffer_store_dword v{R.T+15}, v{V_ONE}, {SR(S_WS)}, s{off_sgpr} offen sc1")

def block_body(a, kind, hooks=None):
    hooks = hooks or {}
    drain = kind != 'loop'
    for i in range(4):
        c = i % 2
        phaseA(a, c)
        pre = ["s_waitcnt lgkmcnt(0)"]
        if i == 0: reads = rdK(c^1, R.A0, 2) + rdV(c^1, R.A0, 1)
        elif i == 1: reads = rdK(c^1, R.A0, 3) + rdV(c^1, R.A0, 2)
        elif i == 2: reads = rdV(c^1, R.A0, 3) + ([] if drain else rdK(c^1, R.A1, 0))
        else: reads = [] if drain else rdK(c^1, R.A1, 1) + rdV(c^1, R.A1, 0)
        if i == 2 and kind != 'first':
            a("s_waitcnt vmcnt(0) lgkmcnt(0)" if kind == 'loop' else "s_waitcnt lgkmcnt(0)")
            a("s_barrier")
            pre = []
            if (kind, 'bar') in hooks: hooks[(kind, 'bar')](a)
        phaseB(a, c, reads, pre=pre, with_s=not (drain and i == 3))
        if (kind, i) in hooks: hooks[(kind, i)](a)

def tail(a):
    a("s_nop 1")
    a(sm32(R.OB, R.UV[1], R.SB[1])); a(sm16(R.LB, R.SB[1]))
    a(sm32(R.OB, R.UV[1]+4, R.SB[1]+8)); a(sm16(R.LB, R.SB[1]+8))

def start_pipeline(a, first):
    T = R.T
    if first:
        for x in rdK(0, V_L16, 0): a(x)
    for x in rdK(1, R.A0, 0): a(x)
    for r in range(16): a(f"v_mov_b32 v{R.SB[1]+r}, 0")
    for r in range(8): a(f"v_mov_b32 v{R.UV[1]+r}, 0")
    if first:
        for r in range(32): a(f"v_mov_b32 v{R.OA+r}, 0")
        for r in range(8): a(f"v_mov_b32 v{R.LA+r}, 0")
        a("s_waitcnt lgkmcnt(2)")
        a(m32(R.SA[1], R.UK[0], R.QA, None)); a(m32(R.SB[0], R.UK[0], R.QB, None))
        a(m32(R.SA[1], R.UK[0]+4, R.QA+4, R.SA[1])); a(m32(R.SB[0], R.UK[0]+4, R.QB+4, R.SB[0]))
        a("s_nop 7"); a("s_nop 3")
        max_chain(a, T, [R.SA[1]+r for r in range(16)])
        max_chain(a, T+2, [R.SB[0]+r for r in range(16)])
        cross_half(a, "v_max_f32", T, T+1)
        cross_half(a, "v_max_f32", T+2, T+3)
        for r in range(16):
            a(f"v_sub_f32 v{R.NMA+r}, 0, v{T}"); a(f"v_sub_f32 v{R.NMB+r}, 0, v{T+2}")
    a("s_waitcnt lgkmcnt(0)")
    for x in rdK(0, R.A0, 1) + rdV(0, R.A0, 0): a(x)
    a(m32(R.SA[0], R.UK[1], R.QA, R.NMA)); a(m32(R.SA[0], R.UK[1]+4, R.QA+4, R.SA[0]))
    a("s_nop 7"); a("s_nop 3")

class B:
    Q = 160; KS = 168; VS = 176; KP = R.KP; VP = R.VP
    SS = 80; SP = 96; O = 112; L = 144; P = 148
def b_attention(a):
    T = R.T; L = V_LANE
    a(f"s_lshl_b32 s{ST}, s{S_TG}, 1")
    a(f"s_add_u32 s{ST}, s{ST}, s{S_BR}")
    a(f"s_mul_i32 s{ST+1}, s{ST}, 6144")
    a(f"s_add_u32 s{ST+1}, s{ST+1}, {L_STASH}")
    a(f"v_add_u32 v{T}, s{ST+1}, v{V_L16}")
    for ks in range(2): a(f"ds_read_b128 {vr(B.Q+4*ks,4)}, v{T} offset:{ks*1024}")
    for ks in range(2): a(f"ds_read_b128 {vr(B.KS+4*ks,4)}, v{T} offset:{2048+ks*1024}")
    for s in range(2): a(f"ds_read_b128 {vr(B.VS+4*s,4)}, v{T} offset:{4096+s*1024}")
    a(f"s_cmp_eq_u32 s{S_HALO}, 1")
    a("s_cbranch_scc1 L_b_halo")
    a(f"s_and_b32 s{ST+2}, s{ST}, 3")
    a(f"s_cmp_eq_u32 s{ST+2}, 0")
    a(f"s_cselect_b32 s{ST+2}, 0, 6144")
    a(f"s_sub_u32 s{ST+1}, s{ST+1}, s{ST+2}")
    a(f"v_add_u32 v{T+1}, s{ST+1}, v{V_L16}")
    for ks in range(2): a(f"ds_read_b128 {vr(B.KP+4*ks,4)}, v{T+1} offset:{2048+ks*1024}")
    a(f"ds_read_b128 {vr(B.VP,4)}, v{T+1} offset:5120")
    a("s_branch L_b_ops")
    a.label("L_b_halo")
    a("s_waitcnt vmcnt(8)")
    a.label("L_b_ops")
    a(f"v_and_b32 v{T}, 31, v{L}")
    a(f"v_lshrrev_b32 v{T+1}, 5, v{L}")
    a(f"v_lshlrev_b32 v{T+1}, 3, v{T+1}")
    a(f"v_sub_u32 v{T}, v{T}, v{T+1}")
    a(f"v_mov_b32 v{T+1}, 0xff800000")
    a(f"s_lshl_b32 s{ST+2}, s{S_NOPREV}, 10")
    a(f"v_add_u32 v{T+2}, s{ST+2}, v{T}")
    S0 = ST + 2
    for g0 in range(0, 16, 4):
        for r in range(g0, g0+4):
            c = 16*(r//8) + r % 8
            a(f"v_subrev_u32 v{B.SS+r}, {c}, v{T}")
        for k, r in enumerate(range(g0, g0+4)):
            a(f"v_cmp_le_u32_e64 s[{S0+2*k}:{S0+2*k+1}], 8, v{B.SS+r}")
        a("s_nop 0")
        for k, r in enumerate(range(g0, g0+4)):
            a(f"v_cndmask_b32_e64 v{B.SS+r}, 0, v{T+1}, s[{S0+2*k}:{S0+2*k+1}]")
    for g0 in (8, 12):
        for k, r in enumerate(range(g0, g0+4)):
            a(f"v_cmp_gt_i32_e64 s[{S0+2*k}:{S0+2*k+1}], v{T+2}, {r-17}")
        a("s_nop 0")
        for k, r in enumerate(range(g0, g0+4)):
            a(f"v_cndmask_b32_e64 v{B.SP+r}, 0, v{T+1}, s[{S0+2*k}:{S0+2*k+1}]")
    for r in range(8): a(f"v_mov_b32 v{B.SP+r}, 0")
    for r in range(16): a(f"v_mov_b32 v{B.O+r}, 0")
    for r in range(4): a(f"v_mov_b32 v{B.L+r}, 0")
    a("s_waitcnt lgkmcnt(0)")
    a(m32(B.SS, B.KS, B.Q, B.SS))
    a(m32(B.SP, B.KP, B.Q, B.SP))
    a(m32(B.SS, B.KS+4, B.Q+4, B.SS))
    a(m32(B.SP, B.KP+4, B.Q+4, B.SP))
    a("s_nop 7"); a("s_nop 3")
    regs = [B.SS+r for r in range(16)] + [B.SP+r for r in range(8, 16)]
    max_chain(a, T, regs)
    cross_half(a, "v_max_f32", T, T+1)
    for r in regs: a(f"v_sub_f32 v{r}, v{r}, v{T}")
    for r in regs: a(f"v_exp_f32 v{r}, v{r}")
    a("s_nop 1")
    a(sm32(B.O, B.VS, B.SS)); a(sm16(B.L, B.SS))
    a(sm32(B.O, B.VS+4, B.SS+8)); a(sm16(B.L, B.SS+8))
    a(sm32(B.O, B.VP, B.SP+8)); a(sm16(B.L, B.SP+8))
    a("s_nop 7")
    a(f"v_rcp_f32 v{T+2}, v{B.L}")
    a("s_nop 3")
    finish_store(a, B.O, T+2, B.P, S_OBD)

def finish_store(a, O, scale, P, soff):
    for r in range(16): a(f"v_mul_f32 v{O+r}, v{scale}, v{O+r}")
    for m in range(8): a(f"v_cvt_pk_bf16_f32 v{P+m}, v{O+2*m}, v{O+2*m+1}")
    for ks in range(2):
        a(f"buffer_store_dwordx4 {vr(P+4*ks,4)}, v{V_L16}, {SR(S_WS)}, s{soff} offen offset:{ks*1024} sc1")

def gen_fallback(a):
    T = R.T; W = SR(S_WS)
    M, L, AL, TM, TT = T+4, T+5, T+6, T+7, T+8
    S = R.SA[0]
    for r in range(16): a(f"v_mov_b32 v{R.OA+r}, 0")
    a(f"v_mov_b32 v{M}, 0xff800000")
    a(f"v_mov_b32 v{L}, 0")
    a(f"s_mov_b32 s{ST}, s{S_KVB}")
    a(f"s_mov_b32 s{ST+1}, 64")
    a.label("L_fb")
    for ks in range(2): a(f"buffer_load_dwordx4 {vr(R.UK[0]+4*ks,4)}, v{V_L16}, {W}, s{ST} offen offset:{ks*1024} sc1")
    for s in range(2): a(f"buffer_load_dwordx4 {vr(R.UV[0]+4*s,4)}, v{V_L16}, {W}, s{ST} offen offset:{2048+s*1024} sc1")
    a("s_waitcnt vmcnt(0)")
    a(m32(S, R.UK[0], R.QA, None)); a(m32(S, R.UK[0]+4, R.QA+4, S))
    a("s_nop 7"); a("s_nop 3")
    max_chain(a, TM, [S+r for r in range(16)])
    cross_half(a, "v_max_f32", TM, TT)
    a(f"v_max_f32 v{TM}, v{TM}, v{M}")
    a(f"v_sub_f32 v{AL}, v{M}, v{TM}")
    a(f"v_exp_f32 v{AL}, v{AL}")
    a(f"v_mov_b32 v{M}, v{TM}")
    for r in range(16): a(f"v_sub_f32 v{S+r}, v{S+r}, v{M}")
    for r in range(16): a(f"v_exp_f32 v{S+r}, v{S+r}")
    a(f"v_mul_f32 v{L}, v{L}, v{AL}")
    for r in range(16):
        a(f"v_and_b32 v{TT}, 0xffff0000, v{S+r}")
        a(f"v_add_f32 v{L}, v{L}, v{TT}")
    for r in range(16): a(f"v_mul_f32 v{R.OA+r}, v{R.OA+r}, v{AL}")
    a("s_nop 1")
    a(sm32(R.OA, R.UV[0], S)); a(sm32(R.OA, R.UV[0]+4, S+8))
    a(f"s_add_u32 s{ST}, s{ST}, 4096")
    a(f"s_sub_u32 s{ST+1}, s{ST+1}, 1")
    a(f"s_cmp_lg_u32 s{ST+1}, 0")
    a("s_nop 7"); a("s_nop 7")
    a("s_cbranch_scc1 L_fb")
    cross_half(a, "v_add_f32", L, TT)
    a(f"v_mov_b32 v{R.LA}, v{L}")

def gen_attention(a, late_hooks=None, pre_combine=None):
    T = R.T; W = SR(S_WS)
    late_hooks = late_hooks or {}
    a(f"s_lshl_b32 s{ST}, s{S_TG}, 1")
    a(f"s_add_u32 s{ST}, s{ST}, s{S_BR}")
    a(f"s_and_b32 s{ST+1}, s{ST}, 3")
    a(f"s_cmp_eq_u32 s{ST+1}, 0")
    a(f"s_cselect_b32 s{ST+1}, 1, 0")
    a(f"s_cmp_eq_u32 s{S_TB}, 0")
    a(f"s_cselect_b32 s{S_NOPREV}, s{ST+1}, 0")
    a(f"s_cselect_b32 s{S_HALO}, 0, s{ST+1}")
    start_pipeline(a, True)
    stamp(a, 6)
    def h0(a):
        a(f"s_lshl_b32 s{ST+2}, s{S_H}, 6")
        a(f"s_lshl_b32 s{ST+3}, s{S_TB}, 3")
        a(f"s_add_u32 s{ST+3}, s{ST+3}, s{S_WV}")
        a(f"s_add_u32 s{ST+3}, s{ST+3}, s{ST+2}")
        a(f"s_lshl_b32 s{ST+3}, s{ST+3}, 2")
        a(f"s_add_u32 s{ST+3}, s{ST+3}, 0x{WS_F1:x}")
        a(f"s_lshl_b32 s{ST+2}, s{ST+2}, 2")
        a(f"s_add_u32 s{ST+2}, s{ST+2}, 0x{WS_F1:x}")
        a("s_waitcnt vmcnt(0)")
        flag_store(a, ST+3)
        a(f"buffer_load_dword v{R.PL}, v{R.PV_}, {W}, s{ST+2} offen sc1")
    def h1(a):
        spin_poll(a, R.PL, R.PV_, S_WS, ST+2, 'f1')
        a(f"s_cmp_eq_u32 s{S_HALO}, 0")
        a("s_cbranch_scc1 L_nohalo_ld")
        a(f"s_lshl_b32 s{ST+3}, s{S_H}, 3")
        a(f"s_add_u32 s{ST+3}, s{ST+3}, s{S_TB}")
        a(f"s_sub_u32 s{ST+3}, s{ST+3}, 1")
        a(f"s_lshl_b32 s{ST+3}, s{ST+3}, 1")
        a(f"s_lshr_b32 s{ST+4}, s{S_TG}, 1")
        a(f"s_add_u32 s{ST+3}, s{ST+3}, s{ST+4}")
        a(f"s_lshl_b32 s{ST+3}, s{ST+3}, 12")
        a(f"s_add_u32 s{ST+3}, s{ST+3}, 0x{WS_HALO:x}")
        for ks in range(2): a(f"buffer_load_dwordx4 {vr(R.KP+4*ks,4)}, v{V_L16}, {W}, s{ST+3} offen offset:{ks*1024} sc1")
        a(f"buffer_load_dwordx4 {vr(R.VP,4)}, v{V_L16}, {W}, s{ST+3} offen offset:2048 sc1")
        a.label("L_nohalo_ld")
        for x in ring_dma() + ring_dma(): a(x)
    block_body(a, 'first', {('first', 0): h0, ('first', 1): h1})
    tail(a)
    stamp(a, 7)
    b_attention(a)
    a(f"v_mov_b32 v{R.A0}, v{R.A1}")
    a(f"v_add_u32 v{R.A1}, 65536, v{R.LB16}")
    a(f"s_mov_b32 s{S_RING}, 65536")
    a(f"s_mov_b32 s{S_N}, 1")
    a("s_waitcnt vmcnt(6)")
    a("s_barrier")
    stamp(a, 8)
    start_pipeline(a, False)
    def hbar(a):
        a(f"s_cmp_ge_u32 s{S_N}, 6")
        a("s_cbranch_scc1 L_nodma")
        for x in ring_dma(): a(x)
        a.label("L_nodma")
        if 'bar' in late_hooks: late_hooks['bar'](a)
    a.label("L_at_loop")
    block_body(a, 'loop', {('loop', 'bar'): hbar})
    a(f"v_mov_b32 v{R.A0}, v{R.A1}")
    a(f"s_add_u32 s{S_RING}, s{S_RING}, 32768")
    a(f"s_cmp_eq_u32 s{S_RING}, 98304")
    a(f"s_cselect_b32 s{S_RING}, 0, s{S_RING}")
    a(f"v_add_u32 v{R.A1}, s{S_RING}, v{R.LB16}")
    a(f"s_add_u32 s{S_N}, s{S_N}, 1")
    a(f"s_cmp_lt_u32 s{S_N}, 7")
    a("s_cbranch_scc1 L_at_loop")
    block_body(a, 'last', late_hooks)
    tail(a)
    stamp(a, 9)
    if pre_combine: pre_combine(a)
    a(f"v_add_u32 v{T}, s{S_M0R}, v{V_L16}")
    a(f"s_xor_b32 s{ST}, s{S_M0R}, 16384")
    a(f"v_add_u32 v{T+1}, s{ST}, v{V_L16}")
    a("s_nop 7"); a("s_nop 3")
    for q in range(4): a(f"ds_write_b128 v{T}, {vr(R.OB+4*q,4)} offset:{q*1024}")
    a(f"ds_write_b128 v{T}, {vr(R.LB,4)} offset:32768")
    a("s_waitcnt lgkmcnt(0)")
    a("s_barrier")
    for q in range(4): a(f"ds_read_b128 {vr(R.SA[0]+4*q,4)}, v{T+1} offset:{q*1024}")
    a(f"ds_read_b128 {vr(R.NMB,4)}, v{T+1} offset:32768")
    a("s_waitcnt lgkmcnt(0)")
    for r in range(16): a(f"v_add_f32 v{R.OA+r}, v{R.OA+r}, v{R.SA[0]+r}")
    a(f"v_add_f32 v{R.LA}, v{R.LA}, v{R.NMB}")
    a(f"v_mov_b32 v{T+2}, 0")
    for r in range(16): a(f"v_fma_f32 v{T+2}, v{R.OA+r}, 0, v{T+2}")
    a(f"v_add_f32 v{T+2}, v{T+2}, v{R.LA}")
    a(f"s_mov_b32 s{ST}, 0x{f2u(2.0**40 if not FORCE_FALLBACK else -1.0):x}")
    a(f"v_cmp_nlt_f32 vcc, v{T+2}, s{ST}")
    a("s_nop 4")
    a("s_cbranch_vccz L_at_fin")
    gen_fallback(a)
    a.label("L_at_fin")
    a(f"v_rcp_f32 v{T+3}, v{R.LA}")
    a("s_nop 0")
    finish_store(a, R.OA, T+3, R.NMA, S_OAD)

S2_T, S2_NT, S2_OBB, S2_OBA, S2_WB, S2_M0, S2_F2P, S2_F3P, S2_F2F, S2_F3F, S2_GOF, S2_OUT = 32, 33, 34, 35, 38, 39, 40, 41, 44, 45, 48, 49
S_WOB, S_WOA, S_OUT = S_A, S_B, S_C
class H:
    DV = 224
    RA = 228; OV = 229; PFV = 230; GT = 231; PD = 232; FP = 233
    ACCB = 0; ACCA = 32; WF = 192
REG = [98304, 131072, 65536, 32768, 0, 98304, 131072, 65536]
def ofs(s): return 64 + 32*((s + 1) % 4)
F3_AT = 1

def g2_setup_v(a, T):
    L = V_LANE
    a(f"s_and_b32 s{ST}, s2, 7")
    a(f"s_lshr_b32 s{ST+1}, s2, 3")
    a(f"s_lshr_b32 s{ST+2}, s{ST}, 1")
    a(f"s_lshl_b32 s{ST+2}, s{ST+2}, 2")
    a(f"s_and_b32 s{ST+3}, s{ST+1}, 3")
    a(f"s_add_u32 s{ST+2}, s{ST+2}, s{ST+3}")
    a(f"s_and_b32 s{ST+3}, s{ST}, 1")
    a(f"s_lshl_b32 s{ST+3}, s{ST+3}, 3")
    a(f"s_lshr_b32 s{ST+4}, s{ST+1}, 2")
    a(f"s_add_u32 s{S2_NT}, s{ST+3}, s{ST+4}")
    a(f"s_lshl_b32 s{S2_T}, s{ST+2}, 2")
    a(f"s_add_u32 s{S2_T}, s{S2_T}, s{S_TG}")
    a(f"s_lshl_b32 s{ST+3}, s{S2_T}, 6")
    a(f"s_lshl_b32 s{ST+4}, s{S_BR}, 4")
    a(f"s_add_u32 s{ST+3}, s{ST+3}, s{ST+4}")
    a(f"s_lshl_b32 s{ST+3}, s{ST+3}, 11")
    a(f"s_add_u32 s{S2_OBA}, s{ST+3}, 0x{WS_O:x}")
    a(f"s_add_u32 s{S2_OBB}, s{S2_OBA}, {32*2048}")
    a(f"s_lshl_b32 s{ST+3}, s{S_BR}, 9")
    a(f"s_lshl_b32 s{ST+4}, s{S_TG}, 5")
    a(f"s_add_u32 s{ST+3}, s{ST+3}, s{ST+4}")
    a(f"s_lshl_b32 s{S2_WB}, s{ST+3}, 11")
    a(f"s_lshl_b32 s{ST+3}, s{S_BR}, 14")
    a(f"s_lshl_b32 s{ST+4}, s{S_TG}, 11")
    a(f"s_add_u32 s{S2_M0}, s{ST+3}, s{ST+4}")
    a(f"s_lshl_b32 s{ST+3}, s{S2_T}, 7")
    a(f"s_add_u32 s{S2_F2P}, s{ST+3}, 0x{WS_F2:x}")
    a(f"s_add_u32 s{S2_F3P}, s{ST+3}, 0x{WS_F3:x}")
    a(f"s_add_u32 s{S2_GOF}, s{ST+3}, 0x{WS_G:x}")
    a(f"s_lshl_b32 s{ST+3}, s{S_TB}, 3")
    a(f"s_lshl_b32 s{ST+4}, s{S_TG}, 1")
    a(f"s_add_u32 s{ST+3}, s{ST+3}, s{ST+4}")
    a(f"s_add_u32 s{ST+3}, s{ST+3}, s{S_BR}")
    a(f"s_lshl_b32 s{ST+3}, s{ST+3}, 5")
    a(f"s_add_u32 s{ST+3}, s{ST+3}, s{S_H}")
    a(f"s_lshl_b32 s{ST+3}, s{ST+3}, 2")
    a(f"s_add_u32 s{S2_F2F}, s{ST+3}, 0x{WS_F2:x}")
    a(f"s_add_u32 s{S2_F3F}, s{ST+3}, 0x{WS_F3:x}")
    a(f"s_lshr_b32 s{ST+3}, s{ST+2}, 1")
    a(f"s_lshl_b32 s{ST+3}, s{ST+3}, 8")
    a(f"s_and_b32 s{ST+4}, s{ST+2}, 1")
    a(f"s_add_u32 s{ST+3}, s{ST+3}, s{ST+4}")
    a(f"s_lshl_b32 s{ST+4}, s{S_TG}, 6")
    a(f"s_add_u32 s{ST+3}, s{ST+3}, s{ST+4}")
    a(f"s_lshl_b32 s{ST+3}, s{ST+3}, 11")
    a(f"s_lshl_b32 s{ST+4}, s{S2_NT}, 7")
    a(f"s_add_u32 s{ST+3}, s{ST+3}, s{ST+4}")
    a(f"s_lshl_b32 s{ST+4}, s{S_BR}, 6")
    a(f"s_add_u32 s{S2_OUT}, s{ST+3}, s{ST+4}")
    a(f"v_lshrrev_b32 v{T}, 2, v{L}")
    a(f"v_lshlrev_b32 v{T}, 11, v{T}")
    a(f"v_and_b32 v{T+1}, 3, v{L}")
    a(f"v_lshlrev_b32 v{T+1}, 4, v{T+1}")
    a(f"s_lshl_b32 s{ST+3}, s{S2_NT}, 7")
    a(f"v_add3_u32 v{H.DV}, v{T}, v{T+1}, s{ST+3}")
    a(f"v_add_u32 v{H.DV+1}, 32768, v{H.DV}")
    a(f"v_add_u32 v{H.DV+2}, 64, v{H.DV}")
    a(f"v_add_u32 v{H.DV+3}, {32768+64}, v{H.DV}")
    a(f"v_lshrrev_b32 v{T}, 5, v{L}")
    a(f"v_lshlrev_b32 v{T}, 8, v{T}")
    a(f"v_bfe_u32 v{T+1}, v{L}, 2, 2")
    a(f"v_lshlrev_b32 v{T+1}, 6, v{T+1}")
    a(f"v_bfe_u32 v{T+2}, v{L}, 4, 1")
    a(f"v_lshlrev_b32 v{T+2}, 5, v{T+2}")
    a(f"v_add3_u32 v{T}, v{T}, v{T+1}, v{T+2}")
    a(f"v_and_b32 v{T+1}, 3, v{L}")
    a(f"v_lshlrev_b32 v{T+1}, 3, v{T+1}")
    a(f"s_mul_i32 s{ST+3}, s{S_BR}, {16384+8192}")
    a(f"v_add3_u32 v{H.RA}, v{T}, v{T+1}, s{ST+3}")
    a(f"v_and_b32 v{H.OV}, 31, v{L}")
    a(f"v_lshlrev_b32 v{H.FP}, 2, v{H.OV}")
    a(f"v_lshlrev_b32 v{H.OV}, 12, v{H.OV}")
    a(f"v_lshrrev_b32 v{T}, 5, v{L}")
    a(f"v_lshlrev_b32 v{T}, 4, v{T}")
    a(f"v_add_u32 v{H.OV}, v{H.OV}, v{T}")
    a(f"s_and_b32 s{ST+3}, s{ST+1}, 15")
    a(f"s_lshl_b32 s{ST+3}, s{ST+3}, 6")
    a(f"s_lshl_b32 s{ST+4}, s{S_WV}, 3")
    a(f"s_add_u32 s{ST+3}, s{ST+3}, s{ST+4}")
    a(f"v_lshrrev_b32 v{T}, 3, v{L}")
    a(f"v_add_u32 v{T}, s{ST+3}, v{T}")
    a(f"v_lshlrev_b32 v{T}, 11, v{T}")
    a(f"v_and_b32 v{T+1}, 7, v{L}")
    a(f"v_lshlrev_b32 v{T+1}, 7, v{T+1}")
    a(f"s_and_b32 s{ST+3}, s{ST}, 1")
    a(f"s_lshl_b32 s{ST+3}, s{ST+3}, 10")
    a(f"v_add3_u32 v{H.PFV}, v{T}, v{T+1}, s{ST+3}")

def g2_srds(a):
    srd(a, S_WOB, P_WOB, 1024*2048)
    srd(a, S_WOA, P_WOA, 1024*2048)
    srd(a, S_OUT, P_OUT, 2048*2048)

def wo_dma(s):
    sr_ = S_WOB if s < 4 else S_WOA
    out = []
    for b in range(2):
        for hf in range(2):
            pre = f"s_add_u32 s{ST+1}, s{S2_WB}, {(s%4)*128*2048}\n" if (b, hf) == (0, 0) else ""
            out.append(pre + f"s_add_u32 m0, s{S2_M0}, {REG[s] + b*8192 + hf*1024}\ns_nop 0\n"
                       f"buffer_load_dwordx4 v{H.DV+2*b+hf}, {SR(sr_)}, s{ST+1} offen lds")
    return out

def late_bar(a):
    u = 'lb'
    a(f"s_cmp_eq_u32 s{S_N}, 1")
    a(f"s_cbranch_scc0 L_{u}_n1")
    flag_store(a, S2_F2F)
    a(f"s_lshr_b32 s{ST+2}, s2, 7")
    a(f"s_cmp_eq_u32 s{ST+2}, 0")
    a(f"s_cselect_b32 s{ST+4}, s{S_WOB}, s{S_WOA}")
    a(f"s_cselect_b32 s{ST+5}, s{S_WOB+1}, s{S_WOA+1}")
    a(f"s_mov_b32 s{ST+6}, s{S_WOB+2}")
    a(f"s_mov_b32 s{ST+7}, s{S_WOB+3}")
    a(f"buffer_load_dword v{H.PD}, v{H.PFV}, {SR(ST+4)}, 0 offen")
    a.label(f"L_{u}_n1")
    for n, s in ((2, 0), (3, 1), (6, 2)):
        a(f"s_cmp_eq_u32 s{S_N}, {n}")
        a(f"s_cbranch_scc0 L_{u}_n{n}")
        for x in wo_dma(s): a(x)
        a.label(f"L_{u}_n{n}")

def gen_gemm2(a, q):
    T = R.T; W = SR(S_WS)
    def oload(s):
        base = S2_OBB if s < 4 else S2_OBA
        for f in range(8):
            if f % 4 == 0: a(f"s_add_u32 s{ST+1}, s{base}, {(s%4)*8192 + (f//4)*4096}")
            a(f"buffer_load_dwordx4 {vr(ofs(s) + f*4, 4)}, v{V_L16}, {W}, s{ST+1} offen offset:{(f%4)*1024} sc1")
            q.issue(('o', s))
    def emit_dma(s):
        for x in wo_dma(s): a(x); q.issue(('w', s))
    for s in (1, 2, 3): oload(s)
    a(f"s_waitcnt vmcnt({q.wait('st')})")
    flag_store(a, S2_F3F); q.issue('f3')
    a("s_barrier")
    stamp(a, 10)
    emit_dma(3); emit_dma(4)
    def reads(s, f, buf):
        hh, ks = f // 2, f % 2
        out = []
        for blk in range(2):
            for tt in range(2):
                off = (32*hh + 16*ks + 8*tt)*64
                reg = H.RA if blk == 0 else H.RA + 0
                out.append(f"ds_read_b64_tr_b16 {vr(H.WF + buf*8 + blk*4 + 2*tt, 2)}, v{RAREG[blk]} offset:{off}")
        return out
    RAREG = [T + 0 + 16, T + 1 + 16]
    a(f"v_add_u32 v{RAREG[0]}, {REG[0]}, v{H.RA}")
    a(f"v_xor_b32 v{RAREG[1]}, 8192, v{H.RA}")
    a(f"v_add_u32 v{RAREG[1]}, {REG[0]}, v{RAREG[1]}")
    for x in reads(0, 0, 0): a(x)
    for s in range(8):
        acc_ = H.ACCB if s < 4 else H.ACCA
        for f in range(8):
            buf = f % 2
            if f == 7 and s < 7:
                n = 63
                for tag in (('o', s+1), ('w', s+1)):
                    if tag in q.q: n = min(n, q.wait(tag))
                a(f"s_waitcnt vmcnt({n}) lgkmcnt(0)" if n < 63 else "s_waitcnt lgkmcnt(0)")
                a("s_barrier")
                d = (REG[s+1] - REG[s]) & 0xffffffff
                a(f"v_add_u32 v{RAREG[0]}, 0x{d:x}, v{RAREG[0]}")
                a(f"v_add_u32 v{RAREG[1]}, 0x{d:x}, v{RAREG[1]}")
                nxt = reads(s+1, 0, buf^1)
            else:
                a("s_waitcnt lgkmcnt(0)")
                nxt = reads(s, f+1, buf^1) if f < 7 else []
            of = ofs(s) + f*4
            first = (s % 4 == 0 and f == 0)
            m = [m32(acc_+16*blk, H.WF + buf*8 + blk*4, of, None if first else acc_+16*blk) for blk in range(2)]
            if nxt: a(nxt[0]); a(nxt[1])
            a(m[0])
            if nxt: a(nxt[2]); a(nxt[3])
            a(m[1])
        if s + 5 < 8: emit_dma(s + 5)
        if s == F3_AT - 1:
            a(f"buffer_load_dword v{R.PL}, v{H.FP}, {W}, s{S2_F3P} offen sc1"); q.issue('poll')
        if s == F3_AT:
            spin_poll(a, R.PL, H.FP, S_WS, S2_F3P, 'f3'); q.q = []
            for u in range(4, s + 5): oload(u)
        elif F3_AT < s < 4: oload(s + 4)
    stamp(a, 11)
    a(f"s_lshl_b32 s{ST}, s{S_WV}, 12")
    a(f"v_add_u32 v{T}, s{ST}, v{V_L16}")
    a(f"s_xor_b32 s{ST}, s{ST}, 16384")
    a(f"v_add_u32 v{T+1}, s{ST}, v{V_L16}")
    a(f"v_sub_f32 v{T+2}, 1.0, v{H.GT}")
    a("s_nop 7")
    for r in range(32): a(f"v_mul_f32 v{H.ACCB+r}, v{T+2}, v{H.ACCB+r}")
    for r in range(32): a(f"v_fma_f32 v{H.ACCB+r}, v{H.GT}, v{H.ACCA+r}, v{H.ACCB+r}")
    for qq in range(4): a(f"ds_write_b128 v{T}, {vr(H.ACCB+16+4*qq,4)} offset:{qq*1024}")
    a("s_waitcnt lgkmcnt(0)")
    a("s_barrier")
    X = 64
    for qq in range(4): a(f"ds_read_b128 {vr(X+4*qq,4)}, v{T+1} offset:{qq*1024}")
    a("s_waitcnt lgkmcnt(0)")
    for r in range(16): a(f"v_add_f32 v{H.ACCB+r}, v{H.ACCB+r}, v{X+r}")
    P = X + 16
    for m in range(8): a(f"v_cvt_pk_bf16_f32 v{P+m}, v{H.ACCB+2*m}, v{H.ACCB+2*m+1}")
    a("s_nop 1")
    a(f"v_permlane32_swap_b32 v{P}, v{P+2}")
    a(f"v_permlane32_swap_b32 v{P+1}, v{P+3}")
    a(f"v_permlane32_swap_b32 v{P+4}, v{P+6}")
    a(f"v_permlane32_swap_b32 v{P+5}, v{P+7}")
    a("s_nop 1")
    for qq in range(2):
        a(f"buffer_store_dwordx4 {vr(P+4*qq,4)}, v{H.OV}, {SR(S_OUT)}, s{S2_OUT} offen offset:{32*qq}")

def gen_fused(kname, upto=3):
    a = Asm()
    gen_prologue(a, kname)
    gen_gemm1(a)
    gen_transition(a)
    q = VMQ()
    W = SR(S_WS)
    def poll2(a):
        a(f"buffer_load_dword v{R.PL}, v{H.FP}, {W}, s{S2_F2P} offen sc1")
    def pre_combine(a):
        spin_poll(a, R.PL, H.FP, S_WS, S2_F2P, 'f2')
        a(f"buffer_load_dword v{H.GT}, v{H.FP}, {W}, s{S2_GOF} offen sc1"); q.issue('g')
        for f in range(8):
            if f % 4 == 0: a(f"s_add_u32 s{ST+1}, s{S2_OBB}, {(f//4)*4096}")
            a(f"buffer_load_dwordx4 {vr(ofs(0) + f*4, 4)}, v{V_L16}, {W}, s{ST+1} offen offset:{(f%4)*1024} sc1")
            q.issue(('o', 0))
    if upto >= 3:
        gen_attention(a, {'bar': late_bar, ('last', 0): poll2}, pre_combine)
        q.issue('st', 2)
        gen_gemm2(a, q)
    else:
        def f2only(a):
            a(f"s_cmp_eq_u32 s{S_N}, 1")
            a("s_cbranch_scc0 L_f2o")
            flag_store(a, S2_F2F)
            a.label("L_f2o")
        gen_attention(a, {'bar': f2only})
    if STAMPS:
        a("s_waitcnt vmcnt(0)")
        stamp_flush(a, R.T + 4)
    a.label("L_end")
    a("s_endpgm")
    return a
```

```python
import sys
from hx import *
import gen5
from gen5 import *
ref = open('cdna_kernels/' + NAME + '.s.ref').read().split('\n')
lead = []
for l in ref:
    if not l.startswith(';'): break
    if '@launch' in l: continue
    lead.append(l)
def write(path):
    kn = NAME + '_kernel'
    a = gen_fused(kn, 3)
    e = check(a.lines); assert not e
    txt = '\n'.join(lead) + '\n' + build_file([(kn, a, 256, 512, LDS_SIZE, 256)]) + '\n'
    open(path, 'w').write(txt)
    print(path, len(txt), 'bytes')
if __name__ == '__main__':
    for s in sys.argv[2:]:
        k, v = s.split('=')
        setattr(gen5, k, eval(v))
    write(sys.argv[1])
```

```python
from asmlib import *
import math, struct
import gen1
from gen1 import f2u, kd, build_file, interleave, QSCALE, NAME

KA_X, KA_WQA, KA_WOA, KA_BX, KA_WQB, KA_WOB, KA_GW, KA_OUT, KA_DBG, KA_WS = [8*i for i in range(10)]
P_X, P_WQA, P_WOA, P_BX, P_WQB, P_WOB, P_GW, P_OUT, P_DBG, P_WS = [32 + 2*i for i in range(10)]
WS_SIZE = 268435456
WS_KV   = 0
WS_O    = 8 << 20
WS_HALO = 16 << 20
WS_G    = 18 << 20
WS_F1   = WS_G + 0x10000
WS_F2   = WS_G + 0x20000
WS_F3   = WS_G + 0x30000
WS_T    = 48 << 20
LDS_SIZE = 163840
SPIN_MAX = 1 << 15

S_A, S_B, S_WS, S_C = 4, 8, 12, 16
S_H, S_TB, S_WV, S_BR, S_TG, S_HH, S_NONCE, S_CNT = 20, 21, 22, 23, 24, 25, 26, 27
S_M0X, S_M0W, S_KX, S_KW = 28, 29, 30, 31
S_XR, S_WR, S_DX, S_DW, S_PX, S_PW, S_XI, S_CNEG = 52, 53, 54, 55, 56, 57, 58, 59
ST = 60
V_LANE, V_L16, V_ONE = 255, 254, 253

STAMPS = False
S_ST = 72
NST = 12
STAMP_SET = ['start','dma0','setup','bar0','g1end','x1','pipe','blk0','restart','loopend','gb0','g2end']
def stamp(a, name):
    if not STAMPS or name not in STAMP_SET: return
    i = STAMP_SET.index(name)
    a("s_memtime s[96:97]"); a("s_memrealtime s[98:99]"); a("s_waitcnt lgkmcnt(0)")
    a(f"s_mov_b32 s{S_ST+2*i}, s96"); a(f"s_mov_b32 s{S_ST+2*i+1}, s98")
def stamp_flush(a, vt):
    if not STAMPS: return
    a(f"s_cmp_lg_u32 s{S_WV}, 0")
    a(f"s_cbranch_scc1 L_st_skip")
    a(f"s_lshl_b32 s96, s2, 7")
    a(f"s_add_u32 s96, s96, 0x{WS_T:x}")
    a(f"v_mov_b32 v{vt+1}, 0")
    for i in range(2*NST):
        a(f"v_mov_b32 v{vt}, s{S_ST+i}")
        a(f"buffer_store_dword v{vt}, v{vt+1}, s[{S_WS}:{S_WS+3}], s96 offen offset:{4*i}")
    a.label("L_st_skip")

def srd(a, s, ptr, size):
    a(f"s_mov_b32 s{s}, s{ptr}"); a(f"s_mov_b32 s{s+1}, s{ptr+1}")
    a(f"s_mov_b32 s{s+2}, 0x{size:x}"); a(f"s_mov_b32 s{s+3}, 0x20000")
def SR(s): return f"s[{s}:{s+3}]"

def m32(D, A, B, C):
    c = vr(C, 16) if C is not None else '0'
    return f"v_mfma_f32_32x32x16_bf16 {vr(D,16)}, {vr(A,4)}, {vr(B,4)}, {c}"

class VMQ:
    def __init__(self): self.q = []
    def issue(self, tag, n=1): self.q += [tag]*n
    def wait(self, tag):
        idx = max(i for i, t in enumerate(self.q) if t == tag)
        n = len(self.q) - 1 - idx
        self.q = self.q[idx+1:]
        return n

LX = 0; LW = 98304
PF_D = 5
PRIO = False
class G:
    ACC = 0; XF = 96; WF = 112
    XA = 136; WA = 144; XD = 145; WD = 149; PX = 152; PW = 153; PD = 154
    GX = 156; GWV = 164
    GO = 172
    T = 174
def acc(f, b): return G.ACC + (f*3+b)*16
def xf(buf, f): return G.XF + (buf*2+f)*4
def wf(buf, b): return G.WF + (buf*3+b)*4

def g1_reads(s, buf):
    X = [f"ds_read_b128 {vr(xf(buf,f),4)}, v{G.XA+f*4+s}" for f in range(2)]
    W = [f"ds_read_b64_tr_b16 {vr(wf(buf,b)+2*tt,2)}, v{G.WA} offset:{s*3072 + b*1024 + tt*256}" for b in range(3) for tt in range(2)]
    return [X[0]] + W + [X[1]]
def g1_mfmas(buf, zero=False):
    m = []
    for f in range(2):
        for b in range(3):
            A, B = (wf(buf,b), xf(buf,f)) if b < 2 else (xf(buf,f), wf(buf,b))
            m.append(m32(acc(f,b), A, B, None if zero else acc(f,b)))
    return m
def dma_w():
    d = [f"s_add_u32 m0, s{S_M0W}, s{S_WR}\ns_nop 0\nbuffer_load_dwordx4 v{G.WD}, {SR(S_B)}, s{S_KW} offen lds"]
    for b in (1, 2): d.append(f"buffer_load_dwordx4 v{G.WD+b}, {SR(S_B)}, s{S_KW} offen offset:{b*1024} lds")
    d[-1] += f"\ns_add_u32 s{S_KW}, s{S_KW}, {64*6144}\ns_xor_b32 s{S_WR}, s{S_WR}, 24576"
    return d
def dma_x():
    d = [f"s_add_u32 m0, s{S_M0X}, s{S_XR}\ns_nop 0\nbuffer_load_dwordx4 v{G.XD}, {SR(S_A)}, s{S_KX} offen lds"]
    for j in (1, 2, 3): d.append(f"buffer_load_dwordx4 v{G.XD+j}, {SR(S_A)}, s{S_KX} offen offset:{j*1024} lds")
    d[-1] += (f"\ns_add_u32 s{S_KX}, s{S_KX}, 128\ns_add_u32 s{S_XR}, s{S_XR}, 32768\n"
              f"s_cmp_eq_u32 s{S_XR}, 98304\ns_cselect_b32 s{S_XR}, 0, s{S_XR}")
    return d
def pf():
    return [f"buffer_load_dword v{G.PD}, v{G.PX}, {SR(S_A)}, s{S_PX} offen",
            f"buffer_load_dword v{G.PD+1}, v{G.PW}, {SR(S_B)}, s{S_PW} offen\n"
            f"s_add_u32 s{S_PX}, s{S_PX}, 128\ns_min_u32 s{S_PX}, s{S_PX}, {15*128}\n"
            f"s_add_u32 s{S_PW}, s{S_PW}, {64*6144}\ns_min_u32 s{S_PW}, s{S_PW}, {15*64*6144}"]
def addr_adv():
    return [f"v_add_u32 v{G.XA+i}, s{S_DX}, v{G.XA+i}" for i in range(8)] + [f"v_add_u32 v{G.WA}, s{S_DW}, v{G.WA}"]
def adv_deltas(a):
    a(f"s_add_u32 s{S_XI}, s{S_XI}, 1")
    a(f"s_cmp_eq_u32 s{S_XI}, 3")
    a(f"s_cselect_b32 s{S_XI}, 0, s{S_XI}")
    a(f"s_cmp_eq_u32 s{S_XI}, 2")
    a(f"s_cselect_b32 s{S_DX}, s{S_CNEG}, s{ST+11}")
    a(f"s_sub_u32 s{S_DW}, 0, s{S_DW}")

def g1_substep(a, buf, nxt, extra, pre_wait, zero=False):
    m = g1_mfmas(buf, zero)
    nr = 8
    need = [3, 5, 7, 8, 8, 8]
    per = [3, 3, 2, 0, 0, 0] if nxt else [0]*6
    issued = 0; k = 0; waited = 0
    ex = list(extra)
    for i in range(6):
        if not pre_wait and need[i] > waited:
            a(f"s_waitcnt lgkmcnt({min(nr - need[i] + issued, 15)})"); waited = need[i]
        a(m[i])
        for _ in range(per[i]):
            if k < len(nxt): a(nxt[k]); k += 1; issued += 1
        if i >= 2:
            take = (len(ex) + (5 - i)) // (6 - i) if i < 5 else len(ex)
            for _ in range(take): a(ex.pop(0))

def g1_step(a, kind, early=(), post=None):
    early = list(early)
    for s in range(4):
        buf = s % 2
        if s < 3:
            ex = []
            if s < 2 and early:
                h = (len(early) + (1 - s)) // (2 - s)
                ex = early[:h]; early = early[h:]
            if s == 2 and kind != 'last': ex = addr_adv()
            g1_substep(a, buf, g1_reads(s+1, buf^1), ex, False, zero=(kind == 'first' and s == 0))
        else:
            nxt = []; ex = []
            if kind == 'last':
                a("s_waitcnt lgkmcnt(0)")
                a("s_barrier")
            else:
                n = {'first': 4 + 2*(PF_D-2), 'loop': 6, 'w': 6, 'none': 0}[kind]
                a(f"s_waitcnt vmcnt({n}) lgkmcnt(0)")
                a("s_barrier")
                nxt = g1_reads(0, buf^1)
                if kind in ('first', 'loop', 'w'): ex += dma_w()
                if kind in ('first', 'loop'): ex += dma_x() + pf()
                if kind == 'none': ex += nonce_load()
            g1_substep(a, buf, nxt, ex, True)
    if post: post(a)

def nonce_load():
    return [f"buffer_load_dword v{G.PD}, v{V_ONE}, {SR(S_C)}, 0 offen sc1"]

def gate_math(a):
    T = G.T
    a(f"v_mov_b32 v{T}, 0")
    for i in range(8): a(f"v_dot2_f32_bf16 v{T}, v{G.GX+i}, v{G.GWV+i}, v{T}")
    a("s_nop 2")
    for sh in (1, 2, 4, 8):
        a("s_nop 1")
        a(f"v_add_f32_dpp v{T}, v{T}, v{T} row_shr:{sh} row_mask:0xf bank_mask:0xf bound_ctrl:0")
    a("s_nop 1")
    for k in range(4): a(f"v_readlane_b32 s{ST+k}, v{T}, {16*k+15}")
    a("s_nop 1")
    a(f"v_mov_b32 v{T}, s{ST}")
    for k in range(1, 4): a(f"v_add_f32 v{T}, s{ST+k}, v{T}")
    a(f"v_mul_f32 v{T}, 0x{f2u(-math.log2(math.e)):x}, v{T}")
    a(f"v_exp_f32 v{T}, v{T}")
    a("s_nop 0")
    a(f"v_add_f32 v{T}, 1.0, v{T}")
    a(f"v_rcp_f32 v{T}, v{T}")
    a("s_nop 0")
    a(f"buffer_store_dword v{T}, v{V_ONE}, {SR(S_WS)}, s{ST+8} offen sc1")

def gen_prologue(a, kname):
    T = G.T
    a.label(kname)
    a("s_cmp_ge_u32 s2, 256")
    a("s_cbranch_scc1 L_end")
    stamp(a, 'start')
    a("s_load_dwordx16 s[32:47], s[0:1], 0")
    a("s_load_dwordx4 s[48:51], s[0:1], 64")
    a(f"s_and_b32 s{ST}, s2, 7")
    a(f"s_lshr_b32 s{ST+1}, s2, 3")
    a(f"s_and_b32 s{S_HH}, s{ST+1}, 3")
    a(f"s_lshl_b32 s{ST}, s{ST}, 2")
    a(f"s_add_u32 s{S_H}, s{ST}, s{S_HH}")
    a(f"s_lshr_b32 s{S_TB}, s{ST+1}, 2")
    a(f"v_lshrrev_b32 v{T}, 6, v0")
    a(f"v_and_b32 v{V_LANE}, 63, v0")
    a(f"v_readfirstlane_b32 s{S_WV}, v{T}")
    a(f"v_lshlrev_b32 v{V_L16}, 4, v{V_LANE}")
    a(f"v_mov_b32 v{T+1}, 0x7fffff00")
    a(f"v_cmp_eq_u32 vcc, 0, v{V_LANE}")
    a(f"s_lshr_b32 s{S_BR}, s{S_WV}, 2")
    a(f"s_and_b32 s{S_TG}, s{S_WV}, 3")
    a(f"v_cndmask_b32_e64 v{V_ONE}, v{T+1}, 0, vcc")
    L = V_LANE
    a(f"v_lshrrev_b32 v{T}, 2, v{L}")
    a(f"s_lshl_b32 s{ST}, s{S_TG}, 4")
    a(f"v_add_u32 v{T}, s{ST}, v{T}")
    a(f"s_movk_i32 s{ST}, 6144")
    a(f"v_mul_lo_u32 v{T}, v{T}, s{ST}")
    a(f"v_and_b32 v{T+1}, 3, v{L}")
    a(f"v_lshlrev_b32 v{T+1}, 4, v{T+1}")
    a(f"s_lshl_b32 s{ST}, s{S_H}, 6")
    a(f"v_add3_u32 v{G.WD}, v{T}, v{T+1}, s{ST}")
    a(f"v_add_u32 v{G.WD+1}, 1024, v{G.WD}")
    a(f"v_add_u32 v{G.WD+2}, 2048, v{G.WD}")
    a(f"s_mul_i32 s{ST}, s{S_BR}, 12288")
    a(f"s_mul_i32 s{ST+1}, s{S_TG}, 3072")
    a(f"s_add_u32 s{S_M0W}, s{ST}, s{ST+1}")
    a(f"s_add_u32 s{S_M0W}, s{S_M0W}, {LW}")
    a(f"v_lshrrev_b32 v{T}, 3, v{L}")
    a(f"s_lshl_b32 s{ST}, s{S_TG}, 5")
    a(f"v_add_u32 v{T}, s{ST}, v{T}")
    a(f"v_lshlrev_b32 v{T}, 1, v{T}")
    a(f"s_lshl_b32 s{ST}, s{S_TB}, 8")
    a(f"s_add_u32 s{ST}, s{ST}, s{S_BR}")
    a(f"v_add_u32 v{T}, s{ST}, v{T}")
    a(f"v_lshlrev_b32 v{T}, 11, v{T}")
    a(f"v_and_b32 v{T+1}, 7, v{L}")
    a(f"v_lshrrev_b32 v{T+2}, 4, v{L}")
    a(f"v_xor_b32 v{T+1}, v{T+1}, v{T+2}")
    a(f"v_xor_b32 v{T+2}, 4, v{T+1}")
    a(f"v_lshlrev_b32 v{T+1}, 4, v{T+1}")
    a(f"v_lshlrev_b32 v{T+2}, 4, v{T+2}")
    for j in range(4):
        src = T+1 if j % 2 == 0 else T+2
        a(f"v_add_u32 v{G.XD+j}, v{T}, v{src}")
        if j: a(f"v_add_u32 v{G.XD+j}, {j*(16*2048 - 1024)}, v{G.XD+j}")
    a(f"s_lshl_b32 s{S_M0X}, s{S_WV}, 12")
    for s_ in (S_KX, S_KW, S_XR, S_WR): a(f"s_mov_b32 s{s_}, 0")
    a("s_waitcnt lgkmcnt(0)")
    srd(a, S_A, P_X, 2048*2048)
    a(f"s_cmp_eq_u32 s{S_BR}, 0")
    a(f"s_cselect_b32 s{S_B}, s{P_WQA}, s{P_WQB}")
    a(f"s_cselect_b32 s{S_B+1}, s{P_WQA+1}, s{P_WQB+1}")
    a(f"s_mov_b32 s{S_B+2}, 0x{1024*6144:x}")
    a(f"s_mov_b32 s{S_B+3}, 0x20000")
    for x in dma_w() + dma_x(): a(x)
    stamp(a, 'dma0')
    if PRIO:
        a(f"s_cmp_ge_u32 s{S_WV}, 4")
        a("s_cbranch_scc0 L_prio")
        a("s_setprio 1")
        a.label("L_prio")
    srd(a, S_WS, P_WS, WS_SIZE)
    srd(a, S_C, P_DBG, 256)
    a(f"s_or_b32 s{ST}, s2, s{S_WV}")
    a(f"s_cmp_lg_u32 s{ST}, 0")
    a("s_cbranch_scc1 L_nononce")
    a(f"s_memrealtime s[{ST}:{ST+1}]")
    a("s_waitcnt lgkmcnt(0)")
    a(f"s_or_b32 s{ST}, s{ST}, 1")
    a(f"v_mov_b32 v{T}, s{ST}")
    a(f"buffer_store_dword v{T}, v{V_ONE}, {SR(S_C)}, 0 offen sc1")
    a.label("L_nononce")
    a(f"s_lshr_b32 s{ST}, s{S_H}, 2")
    a(f"s_lshl_b32 s{ST+1}, s{S_HH}, 3")
    a(f"s_add_u32 s{ST+1}, s{ST+1}, s{S_WV}")
    a(f"s_lshl_b32 s{ST+2}, s{S_TB}, 3")
    a(f"s_add_u32 s{ST+2}, s{ST+2}, s{ST}")
    a(f"s_lshl_b32 s{ST+8}, s{ST+2}, 5")
    a(f"s_add_u32 s{ST+8}, s{ST+8}, s{ST+1}")
    a(f"s_lshl_b32 s{ST+8}, s{ST+8}, 2")
    a(f"s_add_u32 s{ST+8}, s{ST+8}, 0x{WS_G:x}")
    a(f"s_and_b32 s{ST+2}, s{ST}, 3")
    a(f"s_lshl_b32 s{ST+2}, s{ST+2}, 5")
    a(f"s_add_u32 s{ST+2}, s{ST+2}, s{ST+1}")
    a(f"s_lshl_b32 s{ST+2}, s{ST+2}, 1")
    a(f"s_lshr_b32 s{ST+3}, s{ST}, 2")
    a(f"s_add_u32 s{ST+2}, s{ST+2}, s{ST+3}")
    a(f"s_lshl_b32 s{ST+3}, s{S_TB}, 8")
    a(f"s_add_u32 s{ST+2}, s{ST+2}, s{ST+3}")
    a(f"s_lshl_b32 s{ST+2}, s{ST+2}, 11")
    a(f"s_mov_b32 s{ST+4}, s{P_GW}"); a(f"s_mov_b32 s{ST+5}, s{P_GW+1}")
    a(f"s_mov_b32 s{ST+6}, 2048"); a(f"s_mov_b32 s{ST+7}, 0x20000")
    a(f"v_lshlrev_b32 v{G.GO}, 5, v{L}")
    for q in range(2): a(f"buffer_load_dwordx4 {vr(G.GX+4*q,4)}, v{G.GO}, {SR(S_A)}, s{ST+2} offen offset:{16*q}")
    for q in range(2): a(f"buffer_load_dwordx4 {vr(G.GWV+4*q,4)}, v{G.GO}, {SR(ST+4)}, 0 offen offset:{16*q}")
    a(f"s_lshl_b32 s{ST}, s{S_TB}, 8")
    a(f"s_lshl_b32 s{ST+1}, s{S_HH}, 6")
    a(f"s_add_u32 s{ST}, s{ST}, s{ST+1}")
    a(f"s_lshl_b32 s{ST+1}, s{S_WV}, 3")
    a(f"s_add_u32 s{ST}, s{ST}, s{ST+1}")
    a(f"v_add_u32 v{T}, s{ST}, v{L}")
    a(f"v_lshlrev_b32 v{G.PX}, 11, v{T}")
    a(f"v_mov_b32 v{T+1}, 0x7fffff00")
    a(f"v_cmp_gt_u32 vcc, 8, v{L}")
    a(f"s_lshl_b32 s{ST}, s{S_TB}, 3")
    a(f"s_and_b32 s{ST+1}, s{S_HH}, 1")
    a(f"s_lshl_b32 s{ST+1}, s{ST+1}, 2")
    a(f"s_add_u32 s{ST}, s{ST}, s{ST+1}")
    a(f"s_add_u32 s{ST}, s{ST}, s{S_TG}")
    a(f"s_mul_i32 s{ST}, s{ST}, 6144")
    a(f"v_cndmask_b32 v{G.PX}, v{T+1}, v{G.PX}, vcc")
    a(f"s_lshr_b32 s{ST+1}, s{S_H}, 1")
    a(f"s_lshl_b32 s{ST+1}, s{ST+1}, 7")
    a(f"s_add_u32 s{ST}, s{ST}, s{ST+1}")
    a(f"v_lshlrev_b32 v{T}, 11, v{L}")
    a(f"v_add_u32 v{G.PW}, s{ST}, v{T}")
    a(f"v_cmp_gt_u32 vcc, 3, v{L}")
    a(f"s_mov_b32 s{S_PX}, {2*128}")
    a(f"s_mov_b32 s{S_PW}, {2*64*6144}")
    a(f"v_cndmask_b32 v{G.PW}, v{T+1}, v{G.PW}, vcc")
    a(f"v_and_b32 v{T}, 31, v{L}")
    a(f"v_lshrrev_b32 v{T+1}, 5, v{L}")
    a(f"v_lshrrev_b32 v{T+2}, 1, v{T}")
    a(f"v_and_b32 v{T+2}, 7, v{T+2}")
    a(f"v_xor_b32 v{T+1}, v{T+1}, v{T+2}")
    a(f"v_lshlrev_b32 v{T+1}, 4, v{T+1}")
    a(f"v_lshlrev_b32 v{T}, 7, v{T}")
    a(f"v_add_u32 v{T}, v{T}, v{T+1}")
    a(f"s_lshl_b32 s{ST}, s{S_TG}, 13")
    a(f"v_add_u32 v{T}, s{ST}, v{T}")
    a(f"s_lshl_b32 s{ST}, s{S_BR}, 12")
    a(f"s_xor_b32 s{ST+1}, s{ST}, 4096")
    for s in range(4):
        a(f"v_xor_b32 v{T+1}, {32*s}, v{T}")
        a(f"v_add_u32 v{G.XA+s}, s{ST}, v{T+1}")
        a(f"v_add_u32 v{G.XA+4+s}, s{ST+1}, v{T+1}")
    a(f"v_lshrrev_b32 v{T}, 5, v{L}")
    a(f"v_lshlrev_b32 v{T}, 9, v{T}")
    a(f"v_bfe_u32 v{T+1}, v{L}, 2, 2")
    a(f"v_lshlrev_b32 v{T+1}, 6, v{T+1}")
    a(f"v_bfe_u32 v{T+2}, v{L}, 4, 1")
    a(f"v_lshlrev_b32 v{T+2}, 5, v{T+2}")
    a(f"v_add3_u32 v{T}, v{T}, v{T+1}, v{T+2}")
    a(f"v_and_b32 v{T+1}, 3, v{L}")
    a(f"v_lshlrev_b32 v{T+1}, 3, v{T+1}")
    a(f"s_mul_i32 s{ST}, s{S_BR}, 12288")
    a(f"s_add_u32 s{ST}, s{ST}, {LW}")
    a(f"v_add3_u32 v{G.WA}, v{T}, v{T+1}, s{ST}")
    for x in dma_w() + dma_x(): a(x)
    g2_setup_v(a, T)
    a(f"s_mov_b32 s{S_DX}, 32768")
    a(f"s_mov_b32 s{S_DW}, 24576")
    a(f"s_mov_b32 s{S_XI}, 0")
    a(f"s_mov_b32 s{S_CNEG}, 0x{(-65536) & 0xffffffff:x}")
    a(f"s_mov_b32 s{ST+11}, 32768")
    stamp(a, 'setup')
    a("s_waitcnt vmcnt(11)")
    a("s_barrier")
    stamp(a, 'bar0')
    for x in g1_reads(0, 0): a(x)

def gen_gemm1(a):
    early = dma_x()
    for u in range(2, PF_D): early += pf()
    g1_step(a, 'first', early, post=gate_math)
    adv_deltas(a)
    a(f"s_mov_b32 s{S_CNT}, 12")
    a.label("L_g1_loop")
    g1_step(a, 'loop')
    adv_deltas(a)
    a(f"s_sub_u32 s{S_CNT}, s{S_CNT}, 1")
    a(f"s_cmp_lg_u32 s{S_CNT}, 0")
    a("s_cbranch_scc1 L_g1_loop")
    g1_step(a, 'w'); adv_deltas(a)
    g1_step(a, 'none')
    g1_step(a, 'last')
    stamp(a, 'g1end')

L_STASH = 98304
L_QX    = 147456
S_BO, S_KVB, S_RN, S_RING, S_N, S_M0R, S_T0, S_OBD, S_OAD, S_NOPREV, S_HALO, S_QS = 28, 29, 30, 31, 52, 53, 54, 55, 56, 57, 58, 59
class R:
    OA = 0; OB = 16; LA = 32; LB = 36; SEL = 40; IDX = 44; A0 = 45; A1 = 46; DM = 47
    NMA = 48; NMB = 64
    SA = [80, 96]; SB = [112, 144]
    QA = 128; QB = 136
    UK = [160, 176]; UV = [168, 184]
    T = 192
    KP = 208; VP = 216; LB16 = 220; PL = 221; PV_ = 222
    LP = 223
FORCE_FALLBACK = False
uid = [0]
def spin_poll(a, dst, voff, srd_, soff, tag, first=0):
    a(f"s_mov_b32 s{ST}, {SPIN_MAX}")
    a(f"s_waitcnt vmcnt({first})")
    a(f"s_branch L_poll_{tag}_chk")
    a.label(f"L_poll_{tag}")
    a("s_waitcnt vmcnt(0)")
    a.label(f"L_poll_{tag}_chk")
    a(f"v_cmp_ne_u32 vcc, s{S_NONCE}, v{dst}")
    a("s_nop 4")
    a(f"s_cbranch_vccz L_poll_{tag}_ok")
    a(f"s_sub_u32 s{ST}, s{ST}, 1")
    a(f"s_cmp_eq_u32 s{ST}, 0")
    a(f"s_cbranch_scc1 L_poll_{tag}_ok")
    a("s_sleep 2")
    a(f"buffer_load_dword v{dst}, v{voff}, {SR(srd_)}, s{soff} offen sc1")
    a(f"s_branch L_poll_{tag}")
    a.label(f"L_poll_{tag}_ok")

def pack(a, base, dst, scale=None):
    for m in range(8):
        if scale is not None:
            a(f"v_mul_f32 v{base+2*m}, s{scale}, v{base+2*m}")
            a(f"v_mul_f32 v{base+2*m+1}, s{scale}, v{base+2*m+1}")
        a(f"v_cvt_pk_bf16_f32 v{dst+m}, v{base+2*m}, v{base+2*m+1}")

def gen_transition(a):
    T = R.T; L = V_LANE
    W = SR(S_WS)
    a(f"s_mov_b32 s{S_QS}, 0x{f2u(QSCALE):x}")
    a(f"v_and_b32 v{T}, 0x33, v{L}")
    a(f"v_lshrrev_b32 v{T+1}, 1, v{L}")
    a(f"v_and_b32 v{T+1}, 4, v{T+1}")
    a(f"v_or_b32 v{T}, v{T}, v{T+1}")
    a(f"v_lshlrev_b32 v{T+1}, 1, v{L}")
    a(f"v_and_b32 v{T+1}, 8, v{T+1}")
    a(f"v_or_b32 v{T}, v{T}, v{T+1}")
    a(f"v_lshlrev_b32 v{R.LP}, 4, v{T}")
    a(f"s_lshl_b32 s{S_T0}, s{S_TB}, 3")
    a(f"s_lshl_b32 s{ST}, s{S_TG}, 1")
    a(f"s_add_u32 s{ST}, s{ST}, s{S_BR}")
    a(f"s_add_u32 s{S_T0}, s{S_T0}, s{ST}")
    a(f"s_lshl_b32 s{S_KVB}, s{S_H}, 18")
    if WS_KV: a(f"s_add_u32 s{S_KVB}, s{S_KVB}, 0x{WS_KV:x}")
    a(f"s_lshl_b32 s{S_OAD}, s{S_T0}, 6")
    a(f"s_add_u32 s{S_OAD}, s{S_OAD}, s{S_H}")
    a(f"s_lshl_b32 s{S_OAD}, s{S_OAD}, 11")
    a(f"s_add_u32 s{S_OAD}, s{S_OAD}, 0x{WS_O:x}")
    a(f"s_add_u32 s{S_OBD}, s{S_OAD}, {32*2048}")
    a(f"s_cmp_lg_u32 s{S_BR}, 0")
    a("s_cbranch_scc1 L_tr_b")
    a(f"s_lshl_b32 s{ST+1}, s{S_T0}, 12")
    a(f"s_add_u32 s{ST+1}, s{ST+1}, s{S_KVB}")
    a(f"s_lshl_b32 s{ST+2}, s{S_TG}, 13")
    a(f"v_add_u32 v{T}, s{ST+2}, v{R.LP}")
    a(f"v_add_u32 v{T+1}, s{ST+2}, v{V_L16}")
    a(f"s_lshl_b32 s{ST+3}, s{S_TG}, 12")
    a(f"s_add_u32 s{ST+3}, s{ST+3}, {L_QX}")
    a(f"v_add_u32 v{T+2}, s{ST+3}, v{V_L16}")
    a(f"s_add_u32 s{ST+4}, s{ST+1}, 4096")
    a("s_nop 4")
    P = 96
    for f in range(2):
        so = ST+1 if f == 0 else ST+4
        pk = P + f*16; pv = pk + 8
        pack(a, acc(f,1), pk)
        for ks in range(2):
            a(f"buffer_store_dwordx4 {vr(pk+4*ks,4)}, v{R.LP}, {W}, s{so} offen offset:{ks*1024} sc1")
        pack(a, acc(f,2), pv)
        for s in range(2):
            a(f"buffer_store_dwordx4 {vr(pv+4*s,4)}, v{V_L16}, {W}, s{so} offen offset:{2048+s*1024} sc1")
        for ks in range(2): a(f"ds_write_b128 v{T}, {vr(pk+4*ks,4)} offset:{f*4096 + ks*1024}")
        for s in range(2): a(f"ds_write_b128 v{T+1}, {vr(pv+4*s,4)} offset:{f*4096 + 2048 + s*1024}")
    for f in range(2):
        q = R.QA if f == 0 else R.QB
        pack(a, acc(f,0), q, S_QS)
        for ks in range(2): a(f"ds_write_b128 v{T+2}, {vr(q+4*ks,4)} offset:{f*2048 + ks*1024}")
    a("s_branch L_tr_join")
    a.label("L_tr_b")
    a(f"s_mul_i32 s{ST+1}, s{S_TG}, 12288")
    a(f"s_add_u32 s{ST+1}, s{ST+1}, {L_STASH}")
    a(f"v_add_u32 v{T}, s{ST+1}, v{R.LP}")
    a(f"v_add_u32 v{T+1}, s{ST+1}, v{V_L16}")
    a(f"s_lshl_b32 s{ST+2}, s{S_H}, 3")
    a(f"s_add_u32 s{ST+2}, s{ST+2}, s{S_TB}")
    a(f"s_lshl_b32 s{ST+2}, s{ST+2}, 1")
    a(f"s_lshr_b32 s{ST+3}, s{S_TG}, 1")
    a(f"s_add_u32 s{ST+2}, s{ST+2}, s{ST+3}")
    a(f"s_lshl_b32 s{ST+2}, s{ST+2}, 12")
    a(f"s_add_u32 s{ST+2}, s{ST+2}, 0x{WS_HALO:x}")
    a("s_nop 2")
    for f in range(2):
        off = 6144 if f == 0 else 0
        pk = P + f*24; pv = pk + 8; pq = pk + 16
        pack(a, acc(f,1), pk)
        pack(a, acc(f,2), pv)
        if f == 0:
            a(f"s_bitcmp1_b32 s{S_TG}, 0")
            a("s_cbranch_scc0 L_tr_nohalo")
            for ks in range(2):
                a(f"buffer_store_dwordx4 {vr(pk+4*ks,4)}, v{R.LP}, {W}, s{ST+2} offen offset:{ks*1024} sc1")
            a(f"buffer_store_dwordx4 {vr(pv+4,4)}, v{V_L16}, {W}, s{ST+2} offen offset:2048 sc1")
            a.label("L_tr_nohalo")
        for ks in range(2): a(f"ds_write_b128 v{T}, {vr(pk+4*ks,4)} offset:{off + 2048 + ks*1024}")
        for s in range(2): a(f"ds_write_b128 v{T+1}, {vr(pv+4*s,4)} offset:{off + 4096 + s*1024}")
        pack(a, acc(f,0), pq, S_QS)
        for ks in range(2): a(f"ds_write_b128 v{T+1}, {vr(pq+4*ks,4)} offset:{off + ks*1024}")
    a.label("L_tr_join")
    a("s_waitcnt vmcnt(8)")
    a(f"s_cmp_lg_u32 s{S_BR}, 0")
    a("s_cbranch_scc0 L_tr_n0")
    a("s_waitcnt vmcnt(3)")
    a(f"s_bitcmp1_b32 s{S_TG}, 0")
    a("s_cbranch_scc1 L_tr_n0")
    a("s_waitcnt vmcnt(0)")
    a.label("L_tr_n0")
    a(f"v_readfirstlane_b32 s{S_NONCE}, v{G.PD}")
    a(f"s_mov_b32 s{ST}, {SPIN_MAX}")
    a.label("L_nonce_poll")
    a(f"s_cmp_lg_u32 s{S_NONCE}, 0")
    a("s_cbranch_scc1 L_nonce_ok")
    a(f"s_sub_u32 s{ST}, s{ST}, 1")
    a(f"s_cmp_eq_u32 s{ST}, 0")
    a("s_cbranch_scc1 L_nonce_ok")
    a(f"buffer_load_dword v{G.PD}, v{V_ONE}, {SR(S_C)}, 0 offen sc1")
    a("s_waitcnt vmcnt(0)")
    a(f"v_readfirstlane_b32 s{S_NONCE}, v{G.PD}")
    a("s_branch L_nonce_poll")
    a.label("L_nonce_ok")
    g2_srds(a)
    a(f"v_mov_b32 v{R.IDX}, 0xdddddddd")
    a(f"v_bfe_u32 v{T}, v{L}, 2, 1")
    a(f"v_mov_b32 v{T+1}, 0x3f803f80")
    a(f"v_mul_lo_u32 v{R.SEL+2}, v{T}, v{T+1}")
    a(f"v_sub_u32 v{R.SEL}, v{T+1}, v{R.SEL+2}")
    a(f"v_mov_b32 v{R.SEL+3}, v{R.SEL+2}")
    a(f"v_mov_b32 v{R.SEL+1}, v{R.SEL}")
    a(f"s_lshl_b32 s{S_M0R}, s{S_WV}, 12")
    a(f"v_add_u32 v{R.DM}, s{S_M0R}, v{V_L16}")
    a(f"s_lshl_b32 s{ST}, s{S_BR}, 14")
    a(f"v_add_u32 v{R.LB16}, s{ST}, v{V_L16}")
    a(f"v_mov_b32 v{R.A0}, v{R.LB16}")
    a(f"v_add_u32 v{R.A1}, 32768, v{R.LB16}")
    a(f"s_mov_b32 s{S_RING}, 32768")
    a(f"s_add_u32 s{S_BO}, s{S_TB}, 1")
    a(f"s_and_b32 s{S_BO}, s{S_BO}, 7")
    a(f"s_lshl_b32 s{S_BO}, s{S_BO}, 15")
    a(f"s_mov_b32 s{S_RN}, 32768")
    a(f"v_and_b32 v{R.PV_}, 7, v{L}")
    a(f"v_lshlrev_b32 v{R.PV_}, 8, v{R.PV_}")
    if F1_EARLY:
        a(f"s_lshl_b32 s{ST+2}, s{S_H}, 11")
        a(f"s_add_u32 s{ST+2}, s{ST+2}, 0x{WS_F1:x}")
        a(f"s_lshl_b32 s{ST+3}, s{S_TB}, 8")
        a(f"s_add_u32 s{ST+3}, s{ST+3}, s{ST+2}")
        a("s_waitcnt vmcnt(0) lgkmcnt(0)")
        a("s_barrier")
        flag_store(a, ST+3, 'f1')
    else:
        a("s_waitcnt lgkmcnt(0)")
        a("s_barrier")
    stamp(a, 'x1')
    a(f"s_cmp_eq_u32 s{S_BR}, 0")
    a("s_cbranch_scc1 L_tr_haveq")
    a(f"s_lshl_b32 s{ST}, s{S_TG}, 12")
    a(f"s_add_u32 s{ST}, s{ST}, {L_QX}")
    a(f"v_add_u32 v{T}, s{ST}, v{V_L16}")
    for ks in range(2): a(f"ds_read_b128 {vr(R.QA+4*ks,4)}, v{T} offset:{2048 + ks*1024}")
    for ks in range(2): a(f"ds_read_b128 {vr(R.QB+4*ks,4)}, v{T} offset:{ks*1024}")
    a.label("L_tr_haveq")

def sm32(D, A, B): return f"v_smfmac_f32_32x32x32_bf16 {vr(D,16)}, {vr(A,4)}, {vr(B,8)}, v{R.IDX}"
def sm16(D, B): return f"v_smfmac_f32_16x16x64_bf16 {vr(D,4)}, {vr(R.SEL,4)}, {vr(B,8)}, v{R.IDX}"
def max_chain(a, dst, regs):
    regs = list(regs)
    a(f"v_max3_f32 v{dst}, v{regs[0]}, v{regs[1]}, v{regs[2]}")
    k = 3
    while k < len(regs):
        if k + 1 < len(regs):
            a(f"v_max3_f32 v{dst}, v{dst}, v{regs[k]}, v{regs[k+1]}"); k += 2
        else:
            a(f"v_max_f32 v{dst}, v{dst}, v{regs[k]}"); k += 1
def cross_half(a, op, dst, tmp):
    a(f"v_mov_b32 v{tmp}, v{dst}")
    a("s_nop 1")
    a(f"v_permlane32_swap_b32 v{dst}, v{tmp}")
    a("s_nop 1")
    a(f"{op} v{dst}, v{dst}, v{tmp}")

POS = [0, 3, 6, 8, 11, 14]
def phase(a, exps, mats, extra=None):
    extra = extra or {}
    k = 0
    for i, e in enumerate(exps):
        for x in extra.get(i, []): a(x)
        while k < len(mats) and POS[k + (6 - len(mats))] <= i:
            a(mats[k]); k += 1
        a(e)
    while k < len(mats):
        a(mats[k]); k += 1
def phaseA(a, c):
    S = R.SA[c]
    mats = [m32(R.SB[c], R.UK[c^1], R.QB, R.NMB), m32(R.SB[c], R.UK[c^1]+4, R.QB+4, R.SB[c]),
            sm32(R.OB, R.UV[c^1], R.SB[c^1]), sm16(R.LB, R.SB[c^1]),
            sm32(R.OB, R.UV[c^1]+4, R.SB[c^1]+8), sm16(R.LB, R.SB[c^1]+8)]
    phase(a, [f"v_exp_f32 v{S+r}, v{S+r}" for r in range(16)], mats)
def phaseB(a, c, reads, pre=(), with_s=True, fill=()):
    S = R.SB[c]
    mats = []
    if with_s:
        mats += [m32(R.SA[c^1], R.UK[c], R.QA, R.NMA), m32(R.SA[c^1], R.UK[c]+4, R.QA+4, R.SA[c^1])]
    mats += [sm32(R.OA, R.UV[c], R.SA[c]), sm16(R.LA, R.SA[c]),
             sm32(R.OA, R.UV[c]+4, R.SA[c]+8), sm16(R.LA, R.SA[c]+8)]
    for x in pre: a(x)
    extra = {}
    for k, rd in enumerate(reads): extra.setdefault(2 + 2*k, []).append(rd)
    for k, d in enumerate(fill): extra.setdefault(min(1 + 2*k, 15), []).append(d)
    phase(a, [f"v_exp_f32 v{S+r}, v{S+r}" for r in range(16)], mats, extra)
def rdK(buf, areg, tile):
    return [f"ds_read_b128 {vr(R.UK[buf]+4*ks,4)}, v{areg} offset:{tile*4096 + ks*1024}" for ks in range(2)]
def rdV(buf, areg, tile):
    return [f"ds_read_b128 {vr(R.UV[buf]+4*s,4)}, v{areg} offset:{tile*4096 + 2048 + s*1024}" for s in range(2)]

RING_SC1 = True
NO_PF = False
NO_WO = False
NO_POLL2 = False
F1_AT = 3
F1_EARLY = True
D2_LATE = True
NO_RING = False
NO_BAR = False
def ring_dma():
    W = SR(S_WS)
    sc = "sc1 " if RING_SC1 else ""
    d = [f"s_add_u32 m0, s{S_M0R}, s{S_RN}\ns_add_u32 s{ST+1}, s{S_KVB}, s{S_BO}\nbuffer_load_dwordx4 v{R.DM}, {W}, s{ST+1} offen {sc}lds"]
    for j in range(1, 4):
        d.append(f"buffer_load_dwordx4 v{R.DM}, {W}, s{ST+1} offen offset:{j*1024} {sc}lds")
    d[-1] += (f"\ns_add_u32 s{S_BO}, s{S_BO}, 32768\ns_and_b32 s{S_BO}, s{S_BO}, {8*32768-1}\n"
              f"s_add_u32 s{S_RN}, s{S_RN}, 32768\ns_cmp_eq_u32 s{S_RN}, 98304\ns_cselect_b32 s{S_RN}, 0, s{S_RN}")
    return d

def flag_store(a, off_sgpr, tag):
    a(f"s_cmp_lg_u32 s{S_WV}, 0")
    a(f"s_cbranch_scc1 L_fs_{tag}")
    a(f"v_mov_b32 v{R.T+15}, s{S_NONCE}")
    a(f"buffer_store_dword v{R.T+15}, v{V_ONE}, {SR(S_WS)}, s{off_sgpr} offen sc1")
    a.label(f"L_fs_{tag}")

def block_body(a, kind, hooks=None, fills=None, barvm=0):
    hooks = hooks or {}; fills = fills or {}
    drain = kind != 'loop'
    for i in range(4):
        c = i % 2
        phaseA(a, c)
        pre = ["s_waitcnt lgkmcnt(0)"]
        if i == 0: reads = rdK(c^1, R.A0, 2) + rdV(c^1, R.A0, 1)
        elif i == 1: reads = rdK(c^1, R.A0, 3) + rdV(c^1, R.A0, 2)
        elif i == 2: reads = rdV(c^1, R.A0, 3) + ([] if drain else rdK(c^1, R.A1, 0))
        else: reads = [] if drain else rdK(c^1, R.A1, 1) + rdV(c^1, R.A1, 0)
        if i == 2 and kind != 'first':
            a(f"s_waitcnt vmcnt({barvm}) lgkmcnt(0)" if kind == 'loop' else "s_waitcnt lgkmcnt(0)")
            if not (NO_BAR and kind == 'loop'): a("s_barrier")
            pre = []
            if 'bar' in hooks: hooks['bar'](a)
        phaseB(a, c, reads, pre=pre, with_s=not (drain and i == 3), fill=fills.get(i, ()))
        if i in hooks: hooks[i](a)

def next_block(a):
    a(f"v_mov_b32 v{R.A0}, v{R.A1}")
    a(f"s_add_u32 s{S_RING}, s{S_RING}, 32768")
    a(f"s_cmp_eq_u32 s{S_RING}, 98304")
    a(f"s_cselect_b32 s{S_RING}, 0, s{S_RING}")
    a(f"v_add_u32 v{R.A1}, s{S_RING}, v{R.LB16}")

def tail(a):
    a("s_nop 1")
    a(sm32(R.OB, R.UV[1], R.SB[1])); a(sm16(R.LB, R.SB[1]))
    a(sm32(R.OB, R.UV[1]+4, R.SB[1]+8)); a(sm16(R.LB, R.SB[1]+8))

def start_pipeline(a, first):
    T = R.T
    if first:
        for x in rdK(0, V_L16, 0): a(x)
    for x in rdK(1, R.A0, 0): a(x)
    for r in range(16): a(f"v_mov_b32 v{R.SB[1]+r}, 0")
    for r in range(8): a(f"v_mov_b32 v{R.UV[1]+r}, 0")
    if first:
        for r in range(32): a(f"v_mov_b32 v{R.OA+r}, 0")
        for r in range(8): a(f"v_mov_b32 v{R.LA+r}, 0")
        a("s_waitcnt lgkmcnt(2)")
        a(m32(R.SA[1], R.UK[0], R.QA, None)); a(m32(R.SB[0], R.UK[0], R.QB, None))
        a(m32(R.SA[1], R.UK[0]+4, R.QA+4, R.SA[1])); a(m32(R.SB[0], R.UK[0]+4, R.QB+4, R.SB[0]))
        a("s_nop 7"); a("s_nop 3")
        max_chain(a, T, [R.SA[1]+r for r in range(16)])
        max_chain(a, T+2, [R.SB[0]+r for r in range(16)])
        cross_half(a, "v_max_f32", T, T+1)
        cross_half(a, "v_max_f32", T+2, T+3)
        for r in range(16):
            a(f"v_sub_f32 v{R.NMA+r}, 0, v{T}"); a(f"v_sub_f32 v{R.NMB+r}, 0, v{T+2}")
    a("s_waitcnt lgkmcnt(0)")
    for x in rdK(0, R.A0, 1) + rdV(0, R.A0, 0): a(x)
    a(m32(R.SA[0], R.UK[1], R.QA, R.NMA)); a(m32(R.SA[0], R.UK[1]+4, R.QA+4, R.SA[0]))
    a("s_nop 7"); a("s_nop 3")

class B:
    Q = 160; KS = 168; VS = 176; KP = R.KP; VP = R.VP
    SS = 80; SP = 96; O = 112; L = 144; P = 148
def b_attention(a, npf):
    T = R.T; L = V_LANE
    a(f"s_lshl_b32 s{ST}, s{S_TG}, 1")
    a(f"s_add_u32 s{ST}, s{ST}, s{S_BR}")
    a(f"s_mul_i32 s{ST+1}, s{ST}, 6144")
    a(f"s_add_u32 s{ST+1}, s{ST+1}, {L_STASH}")
    a(f"v_add_u32 v{T}, s{ST+1}, v{V_L16}")
    for ks in range(2): a(f"ds_read_b128 {vr(B.Q+4*ks,4)}, v{T} offset:{ks*1024}")
    for ks in range(2): a(f"ds_read_b128 {vr(B.KS+4*ks,4)}, v{T} offset:{2048+ks*1024}")
    for s in range(2): a(f"ds_read_b128 {vr(B.VS+4*s,4)}, v{T} offset:{4096+s*1024}")
    a(f"s_cmp_eq_u32 s{S_HALO}, 1")
    a("s_cbranch_scc1 L_b_halo")
    a(f"s_and_b32 s{ST+2}, s{ST}, 3")
    a(f"s_cmp_eq_u32 s{ST+2}, 0")
    a(f"s_cselect_b32 s{ST+2}, 0, 6144")
    a(f"s_sub_u32 s{ST+1}, s{ST+1}, s{ST+2}")
    a(f"v_add_u32 v{T+1}, s{ST+1}, v{V_L16}")
    for ks in range(2): a(f"ds_read_b128 {vr(B.KP+4*ks,4)}, v{T+1} offset:{2048+ks*1024}")
    a(f"ds_read_b128 {vr(B.VP,4)}, v{T+1} offset:5120")
    a("s_branch L_b_ops")
    a.label("L_b_halo")
    a(f"s_waitcnt vmcnt({4 if D2_LATE else 8})")
    a.label("L_b_ops")
    if D2_LATE:
        for x in ring_dma(): a(x)
    a(f"v_and_b32 v{T}, 31, v{L}")
    a(f"v_lshrrev_b32 v{T+1}, 5, v{L}")
    a(f"v_lshlrev_b32 v{T+1}, 3, v{T+1}")
    a(f"v_sub_u32 v{T}, v{T}, v{T+1}")
    a(f"v_mov_b32 v{T+1}, 0xff800000")
    a(f"s_lshl_b32 s{ST+2}, s{S_NOPREV}, 10")
    a(f"v_add_u32 v{T+2}, s{ST+2}, v{T}")
    S0 = ST + 2
    for g0 in range(0, 16, 4):
        for r in range(g0, g0+4):
            c = 16*(r//8) + r % 8
            a(f"v_subrev_u32 v{B.SS+r}, {c}, v{T}")
        for k, r in enumerate(range(g0, g0+4)):
            a(f"v_cmp_le_u32_e64 s[{S0+2*k}:{S0+2*k+1}], 8, v{B.SS+r}")
        a("s_nop 0")
        for k, r in enumerate(range(g0, g0+4)):
            a(f"v_cndmask_b32_e64 v{B.SS+r}, 0, v{T+1}, s[{S0+2*k}:{S0+2*k+1}]")
    for g0 in (8, 12):
        for k, r in enumerate(range(g0, g0+4)):
            a(f"v_cmp_gt_i32_e64 s[{S0+2*k}:{S0+2*k+1}], v{T+2}, {r-17}")
        a("s_nop 0")
        for k, r in enumerate(range(g0, g0+4)):
            a(f"v_cndmask_b32_e64 v{B.SP+r}, 0, v{T+1}, s[{S0+2*k}:{S0+2*k+1}]")
    for r in range(8): a(f"v_mov_b32 v{B.SP+r}, 0")
    for r in range(16): a(f"v_mov_b32 v{B.O+r}, 0")
    for r in range(4): a(f"v_mov_b32 v{B.L+r}, 0")
    a("s_waitcnt lgkmcnt(0)")
    a(m32(B.SS, B.KS, B.Q, B.SS))
    a(m32(B.SP, B.KP, B.Q, B.SP))
    a(m32(B.SS, B.KS+4, B.Q+4, B.SS))
    a(m32(B.SP, B.KP+4, B.Q+4, B.SP))
    a("s_nop 7"); a("s_nop 3")
    regs = [B.SS+r for r in range(16)] + [B.SP+r for r in range(8, 16)]
    max_chain(a, T, regs)
    cross_half(a, "v_max_f32", T, T+1)
    for r in regs: a(f"v_sub_f32 v{r}, v{r}, v{T}")
    for r in regs: a(f"v_exp_f32 v{r}, v{r}")
    a("s_nop 1")
    a(sm32(B.O, B.VS, B.SS)); a(sm16(B.L, B.SS))
    a(sm32(B.O, B.VS+4, B.SS+8)); a(sm16(B.L, B.SS+8))
    a(sm32(B.O, B.VP, B.SP+8)); a(sm16(B.L, B.SP+8))
    a("s_nop 7")
    a(f"v_rcp_f32 v{T+2}, v{B.L}")
    a("s_nop 3")
    finish_store(a, B.O, T+2, B.P, S_OBD)

def finish_store(a, O, scale, P, soff):
    for r in range(16): a(f"v_mul_f32 v{O+r}, v{scale}, v{O+r}")
    for m in range(8): a(f"v_cvt_pk_bf16_f32 v{P+m}, v{O+2*m}, v{O+2*m+1}")
    for ks in range(2):
        a(f"buffer_store_dwordx4 {vr(P+4*ks,4)}, v{V_L16}, {SR(S_WS)}, s{soff} offen offset:{ks*1024} sc1")

def gen_fallback(a):
    T = R.T; W = SR(S_WS)
    M, L, AL, TM, TT = T+4, T+5, T+6, T+7, T+8
    S = R.SA[0]
    for r in range(16): a(f"v_mov_b32 v{R.OA+r}, 0")
    a(f"v_mov_b32 v{M}, 0xff800000")
    a(f"v_mov_b32 v{L}, 0")
    a(f"s_mov_b32 s{ST}, s{S_KVB}")
    a(f"s_mov_b32 s{ST+1}, 64")
    FK, FV, FQ_ = R.NMA, R.NMA + 8, R.KP
    a.label("L_fb")
    for ks in range(2): a(f"buffer_load_dwordx4 {vr(FK+4*ks,4)}, v{V_L16}, {W}, s{ST} offen offset:{ks*1024} sc1")
    for s in range(2): a(f"buffer_load_dwordx4 {vr(FV+4*s,4)}, v{V_L16}, {W}, s{ST} offen offset:{2048+s*1024} sc1")
    a("s_waitcnt vmcnt(0)")
    a(m32(S, FK, FQ_, None)); a(m32(S, FK+4, FQ_+4, S))
    a("s_nop 7"); a("s_nop 3")
    max_chain(a, TM, [S+r for r in range(16)])
    cross_half(a, "v_max_f32", TM, TT)
    a(f"v_max_f32 v{TM}, v{TM}, v{M}")
    a(f"v_sub_f32 v{AL}, v{M}, v{TM}")
    a(f"v_exp_f32 v{AL}, v{AL}")
    a(f"v_mov_b32 v{M}, v{TM}")
    for r in range(16): a(f"v_sub_f32 v{S+r}, v{S+r}, v{M}")
    for r in range(16): a(f"v_exp_f32 v{S+r}, v{S+r}")
    a(f"v_mul_f32 v{L}, v{L}, v{AL}")
    for r in range(16):
        a(f"v_and_b32 v{TT}, 0xffff0000, v{S+r}")
        a(f"v_add_f32 v{L}, v{L}, v{TT}")
    for r in range(16): a(f"v_mul_f32 v{R.OA+r}, v{R.OA+r}, v{AL}")
    a("s_nop 1")
    a(sm32(R.OA, FV, S)); a(sm32(R.OA, FV+4, S+8))
    a(f"s_add_u32 s{ST}, s{ST}, 4096")
    a(f"s_sub_u32 s{ST+1}, s{ST+1}, 1")
    a(f"s_cmp_lg_u32 s{ST+1}, 0")
    a("s_nop 7"); a("s_nop 7")
    a("s_cbranch_scc1 L_fb")
    cross_half(a, "v_add_f32", L, TT)
    a(f"v_mov_b32 v{R.LA}, v{L}")

def gen_attention(a, late_hooks=None, pre_combine=None):
    T = R.T; W = SR(S_WS)
    late_hooks = late_hooks or {}
    a(f"s_lshl_b32 s{ST}, s{S_TG}, 1")
    a(f"s_add_u32 s{ST}, s{ST}, s{S_BR}")
    a(f"s_and_b32 s{ST+1}, s{ST}, 3")
    a(f"s_cmp_eq_u32 s{ST+1}, 0")
    a(f"s_cselect_b32 s{ST+1}, 1, 0")
    a(f"s_cmp_eq_u32 s{S_TB}, 0")
    a(f"s_cselect_b32 s{S_NOPREV}, s{ST+1}, 0")
    a(f"s_cselect_b32 s{S_HALO}, 0, s{ST+1}")
    start_pipeline(a, True)
    npf = 0
    stamp(a, 'pipe')
    def h0(a):
        a(f"s_lshl_b32 s{ST+2}, s{S_H}, 11")
        a(f"s_add_u32 s{ST+2}, s{ST+2}, 0x{WS_F1:x}")
        a(f"s_lshl_b32 s{ST+3}, s{S_TB}, 8")
        a(f"s_add_u32 s{ST+3}, s{ST+3}, s{ST+2}")
        if not F1_EARLY:
            stamp(a, 'h0a')
            a("s_waitcnt vmcnt(0)")
            a("s_barrier")
            flag_store(a, ST+3, 'f1')
        stamp(a, 'h0b')
        if F1_AT == 1: hp(a)
    def hp(a):
        a(f"buffer_load_dword v{R.PL}, v{R.PV_}, {W}, s{ST+2} offen sc1")
    def h1(a):
        stamp(a, 'h1a')
        spin_poll(a, R.PL, R.PV_, S_WS, ST+2, 'f1', first=0)
        stamp(a, 'h1b')
        a(f"s_cmp_eq_u32 s{S_HALO}, 0")
        a("s_cbranch_scc1 L_nohalo_ld")
        a(f"s_lshl_b32 s{ST+3}, s{S_H}, 3")
        a(f"s_add_u32 s{ST+3}, s{ST+3}, s{S_TB}")
        a(f"s_sub_u32 s{ST+3}, s{ST+3}, 1")
        a(f"s_lshl_b32 s{ST+3}, s{ST+3}, 1")
        a(f"s_lshr_b32 s{ST+4}, s{S_TG}, 1")
        a(f"s_add_u32 s{ST+3}, s{ST+3}, s{ST+4}")
        a(f"s_lshl_b32 s{ST+3}, s{ST+3}, 12")
        a(f"s_add_u32 s{ST+3}, s{ST+3}, 0x{WS_HALO:x}")
        for ks in range(2): a(f"buffer_load_dwordx4 {vr(R.KP+4*ks,4)}, v{V_L16}, {W}, s{ST+3} offen offset:{ks*1024} sc1")
        a(f"buffer_load_dwordx4 {vr(R.VP,4)}, v{V_L16}, {W}, s{ST+3} offen offset:2048 sc1")
        a.label("L_nohalo_ld")
        for x in ring_dma() + ([] if D2_LATE else ring_dma()): a(x)
    block_body(a, 'first', {0: h0, F1_AT: h1} if F1_AT == 1 else {0: h0, F1_AT - 1: hp, F1_AT: h1})
    tail(a)
    stamp(a, 'blk0')
    b_attention(a, npf)
    stamp(a, 'battn')
    for r in range(8): a(f"v_mov_b32 v{R.KP+r}, v{R.QA+r}")
    a(f"v_mov_b32 v{R.A0}, v{R.A1}")
    a(f"v_add_u32 v{R.A1}, 65536, v{R.LB16}")
    a(f"s_mov_b32 s{S_RING}, 65536")
    a(f"s_waitcnt vmcnt({6+npf})")
    a("s_barrier")
    stamp(a, 'restart')
    start_pipeline(a, False)
    late = late_hooks
    ring = (lambda: []) if NO_RING else ring_dma
    block_body(a, 'loop', {'bar': late.get('f2')}, {0: late['wo'](0)[:2], 1: late['wo'](0)[2:], 2: ring(), 3: late['wo'](1)}, barvm=len(late['wo'](0)))
    next_block(a)
    a(f"s_mov_b32 s{S_N}, 4")
    a.label("L_at_loop")
    stamp(a, 'it')
    block_body(a, 'loop', None, {2: ring()})
    next_block(a)
    a(f"s_sub_u32 s{S_N}, s{S_N}, 1")
    a(f"s_cmp_lg_u32 s{S_N}, 0")
    a("s_cbranch_scc1 L_at_loop")
    pf = late['pf']() if 'pf' in late else []
    block_body(a, 'loop', None, {0: pf, 3: late['wo'](2)}, barvm=len(pf))
    next_block(a)
    block_body(a, 'last', {0: late['poll2']} if 'poll2' in late else None)
    tail(a)
    stamp(a, 'loopend')
    if pre_combine: pre_combine(a)
    stamp(a, 'f2ok')
    a(f"v_add_u32 v{T}, s{S_M0R}, v{V_L16}")
    a(f"s_xor_b32 s{ST}, s{S_M0R}, 16384")
    a(f"v_add_u32 v{T+1}, s{ST}, v{V_L16}")
    a("s_nop 7"); a("s_nop 3")
    for q in range(4): a(f"ds_write_b128 v{T}, {vr(R.OB+4*q,4)} offset:{q*1024}")
    a(f"ds_write_b128 v{T}, {vr(R.LB,4)} offset:32768")
    a("s_waitcnt lgkmcnt(0)")
    a("s_barrier")
    for q in range(4): a(f"ds_read_b128 {vr(R.SA[0]+4*q,4)}, v{T+1} offset:{q*1024}")
    a(f"ds_read_b128 {vr(R.NMB,4)}, v{T+1} offset:32768")
    a("s_waitcnt lgkmcnt(0)")
    for r in range(16): a(f"v_add_f32 v{R.OA+r}, v{R.OA+r}, v{R.SA[0]+r}")
    a(f"v_add_f32 v{R.LA}, v{R.LA}, v{R.NMB}")
    a(f"v_mov_b32 v{T+2}, 0")
    for r in range(16): a(f"v_fma_f32 v{T+2}, v{R.OA+r}, 0, v{T+2}")
    a(f"v_add_f32 v{T+2}, v{T+2}, v{R.LA}")
    a(f"s_mov_b32 s{ST}, 0x{f2u(2.0**40 if not FORCE_FALLBACK else -1.0):x}")
    a(f"v_cmp_nlt_f32 vcc, v{T+2}, s{ST}")
    a("s_nop 4")
    a("s_cbranch_vccz L_at_fin")
    gen_fallback(a)
    a.label("L_at_fin")
    stamp(a, 'comb')
    a(f"v_rcp_f32 v{T+3}, v{R.LA}")
    a("s_nop 0")
    finish_store(a, R.OA, T+3, R.NMA, S_OAD)

S2_T, S2_NT, S2_OBB, S2_OBA, S2_WB, S2_M0, S2_F2P, S2_F3P, S2_F2F, S2_F3F, S2_GOF, S2_OUT, S2_ROT = 32, 33, 34, 35, 38, 39, 40, 41, 44, 45, 48, 49, 50
ROTATE = True
def rot_off(s, shift, base, dst):
    return (f"s_add_u32 s{dst}, s{S2_ROT}, {s%4}\ns_and_b32 s{dst}, s{dst}, 3\ns_lshl_b32 s{dst}, s{dst}, {shift}\n"
            f"s_add_u32 s{dst}, s{dst}, s{base}")
S_WOB, S_WOA, S_OUT = S_A, S_B, S_C
class H:
    DV = 224
    RA = 228; OV = 229; PFV = 230; GT = 231; PD = 232; FP = 233; FQ = 234
    ACCB = 0; ACCA = 32; WF = 192
REG = [98304, 131072, 65536, 32768, 0, 98304, 131072, 65536]
def ofs(s): return 64 + 32*((s + 1) % 4)
F3_AT = 1
POLL_EARLY = True

def g2_setup_v(a, T):
    L = V_LANE
    a(f"s_and_b32 s{ST}, s2, 7")
    a(f"s_lshr_b32 s{ST+1}, s2, 3")
    a(f"s_lshr_b32 s{ST+2}, s{ST}, 1")
    a(f"s_lshl_b32 s{ST+2}, s{ST+2}, 2")
    a(f"s_and_b32 s{ST+3}, s{ST+1}, 3")
    a(f"s_add_u32 s{ST+2}, s{ST+2}, s{ST+3}")
    a(f"s_and_b32 s{ST+3}, s{ST}, 1")
    a(f"s_lshl_b32 s{ST+3}, s{ST+3}, 3")
    a(f"s_lshr_b32 s{ST+4}, s{ST+1}, 2")
    a(f"s_add_u32 s{S2_NT}, s{ST+3}, s{ST+4}")
    a(f"s_lshl_b32 s{S2_T}, s{ST+2}, 2")
    a(f"s_add_u32 s{S2_T}, s{S2_T}, s{S_TG}")
    a(f"s_lshl_b32 s{ST+3}, s{S2_T}, 6")
    a(f"s_lshl_b32 s{ST+4}, s{S_BR}, 4")
    a(f"s_add_u32 s{ST+3}, s{ST+3}, s{ST+4}")
    a(f"s_lshl_b32 s{ST+3}, s{ST+3}, 11")
    a(f"s_add_u32 s{S2_OBA}, s{ST+3}, 0x{WS_O:x}")
    a(f"s_add_u32 s{S2_OBB}, s{S2_OBA}, {32*2048}")
    a(f"s_lshl_b32 s{ST+3}, s{S_BR}, 9")
    a(f"s_lshl_b32 s{ST+4}, s{S_TG}, 5")
    a(f"s_add_u32 s{ST+3}, s{ST+3}, s{ST+4}")
    a(f"s_lshl_b32 s{S2_WB}, s{ST+3}, 11")
    a(f"s_lshl_b32 s{ST+3}, s{S_BR}, 14")
    a(f"s_lshl_b32 s{ST+4}, s{S_TG}, 11")
    a(f"s_add_u32 s{S2_M0}, s{ST+3}, s{ST+4}")
    a(f"s_lshl_b32 s{ST+3}, s{S2_T}, 7")
    a(f"s_add_u32 s{S2_GOF}, s{ST+3}, 0x{WS_G:x}")
    a(f"s_lshr_b32 s{ST+3}, s{ST+2}, 1")
    a(f"s_lshl_b32 s{ST+3}, s{ST+3}, 13")
    a(f"s_add_u32 s{S2_F2P}, s{ST+3}, 0x{WS_F2:x}")
    a(f"s_add_u32 s{S2_F3P}, s{ST+3}, 0x{WS_F3:x}")
    a(f"s_lshl_b32 s{ST+3}, s{S_TB}, 5")
    a(f"s_add_u32 s{ST+3}, s{ST+3}, s{S_H}")
    a(f"s_lshl_b32 s{ST+3}, s{ST+3}, 8")
    a(f"s_add_u32 s{S2_F2F}, s{ST+3}, 0x{WS_F2:x}")
    a(f"s_add_u32 s{S2_F3F}, s{ST+3}, 0x{WS_F3:x}")
    a(f"s_lshr_b32 s{ST+3}, s{ST+2}, 1")
    a(f"s_lshl_b32 s{ST+3}, s{ST+3}, 8")
    a(f"s_and_b32 s{ST+4}, s{ST+2}, 1")
    a(f"s_add_u32 s{ST+3}, s{ST+3}, s{ST+4}")
    a(f"s_lshl_b32 s{ST+4}, s{S_TG}, 6")
    a(f"s_add_u32 s{ST+3}, s{ST+3}, s{ST+4}")
    a(f"s_lshl_b32 s{ST+3}, s{ST+3}, 11")
    a(f"s_lshl_b32 s{ST+4}, s{S2_NT}, 7")
    a(f"s_add_u32 s{ST+3}, s{ST+3}, s{ST+4}")
    a(f"s_lshl_b32 s{ST+4}, s{S_BR}, 6")
    a(f"s_add_u32 s{S2_OUT}, s{ST+3}, s{ST+4}")
    a(f"v_lshrrev_b32 v{T}, 2, v{L}")
    a(f"v_lshlrev_b32 v{T}, 11, v{T}")
    a(f"v_and_b32 v{T+1}, 3, v{L}")
    a(f"v_lshlrev_b32 v{T+1}, 4, v{T+1}")
    a(f"s_lshl_b32 s{ST+3}, s{S2_NT}, 7")
    a(f"v_add3_u32 v{H.DV}, v{T}, v{T+1}, s{ST+3}")
    a(f"v_add_u32 v{H.DV+1}, 32768, v{H.DV}")
    a(f"v_add_u32 v{H.DV+2}, 64, v{H.DV}")
    a(f"v_add_u32 v{H.DV+3}, {32768+64}, v{H.DV}")
    a(f"v_lshrrev_b32 v{T}, 5, v{L}")
    a(f"v_lshlrev_b32 v{T}, 8, v{T}")
    a(f"v_bfe_u32 v{T+1}, v{L}, 2, 2")
    a(f"v_lshlrev_b32 v{T+1}, 6, v{T+1}")
    a(f"v_bfe_u32 v{T+2}, v{L}, 4, 1")
    a(f"v_lshlrev_b32 v{T+2}, 5, v{T+2}")
    a(f"v_add3_u32 v{T}, v{T}, v{T+1}, v{T+2}")
    a(f"v_and_b32 v{T+1}, 3, v{L}")
    a(f"v_lshlrev_b32 v{T+1}, 3, v{T+1}")
    a(f"s_mul_i32 s{ST+3}, s{S_BR}, {16384+8192}")
    a(f"v_add3_u32 v{H.RA}, v{T}, v{T+1}, s{ST+3}")
    a(f"v_and_b32 v{H.OV}, 31, v{L}")
    a(f"v_lshlrev_b32 v{H.FP}, 2, v{H.OV}")
    a(f"v_lshlrev_b32 v{H.FQ}, 8, v{H.OV}")
    a(f"s_lshr_b32 s{S2_ROT}, s{ST+1}, 2")
    a(f"s_and_b32 s{S2_ROT}, s{S2_ROT}, {3 if ROTATE else 0}")
    a(f"v_lshlrev_b32 v{H.OV}, 12, v{H.OV}")
    a(f"v_lshrrev_b32 v{T}, 5, v{L}")
    a(f"v_lshlrev_b32 v{T}, 4, v{T}")
    a(f"v_add_u32 v{H.OV}, v{H.OV}, v{T}")
    a(f"s_and_b32 s{ST+3}, s{ST+1}, 15")
    a(f"s_lshl_b32 s{ST+3}, s{ST+3}, 6")
    a(f"s_lshl_b32 s{ST+4}, s{S_WV}, 3")
    a(f"s_add_u32 s{ST+3}, s{ST+3}, s{ST+4}")
    a(f"v_lshrrev_b32 v{T}, 3, v{L}")
    a(f"v_add_u32 v{T}, s{ST+3}, v{T}")
    a(f"v_lshlrev_b32 v{T}, 11, v{T}")
    a(f"v_and_b32 v{T+1}, 7, v{L}")
    a(f"v_lshlrev_b32 v{T+1}, 7, v{T+1}")
    a(f"s_and_b32 s{ST+3}, s{ST}, 1")
    a(f"s_lshl_b32 s{ST+3}, s{ST+3}, 10")
    a(f"v_add3_u32 v{H.PFV}, v{T}, v{T+1}, s{ST+3}")

def g2_srds(a):
    srd(a, S_WOB, P_WOB, 1024*2048)
    srd(a, S_WOA, P_WOA, 1024*2048)
    srd(a, S_OUT, P_OUT, 2048*2048)

def wo_dma(s):
    sr_ = S_WOB if s < 4 else S_WOA
    out = []
    for b in range(2):
        for hf in range(2):
            pre = rot_off(s, 18, S2_WB, ST+1) + "\n" if (b, hf) == (0, 0) else ""
            out.append(pre + f"s_add_u32 m0, s{S2_M0}, {REG[s] + b*8192 + hf*1024}\ns_nop 0\n"
                       f"buffer_load_dwordx4 v{H.DV+2*b+hf}, {SR(sr_)}, s{ST+1} offen lds")
    return out

def wo_prefetch():
    if NO_PF: return []
    return [f"s_lshr_b32 s{ST+4}, s2, 7\n"
            f"s_cmp_eq_u32 s{ST+4}, 0\n"
            f"s_cselect_b32 s{ST+4}, s{S_WOB}, s{S_WOA}\n"
            f"s_cselect_b32 s{ST+5}, s{S_WOB+1}, s{S_WOA+1}\n"
            f"s_mov_b32 s{ST+6}, s{S_WOB+2}\n"
            f"s_mov_b32 s{ST+7}, s{S_WOB+3}\n"
            f"buffer_load_dword v{H.PD}, v{H.PFV}, {SR(ST+4)}, 0 offen"]

G2_PRE = [('o', 1), ('o', 2), ('w', 3)]
G2_SCHED = {0: [('o', 3), ('w', 4)], 1: ['poll', ('w', 5)], 2: ['chk', ('o', 4), ('o', 5)], 3: [('o', 6), ('w', 6)], 4: [('o', 7), ('w', 7)]}
def gen_gemm2(a, q):
    T = R.T; W = SR(S_WS)
    def items(it):
        if it == 'poll': return [('poll', f"buffer_load_dword v{R.PL}, v{H.FQ}, {W}, s{S2_F3P} offen sc1")]
        kind, s = it
        if kind == 'w': return [(it, x) for x in wo_dma(s)]
        base = S2_OBB if s < 4 else S2_OBA
        out = []
        for f in range(8):
            pre = rot_off(s, 13, base, ST+1) + "\n" if f == 0 else (f"s_add_u32 s{ST+1}, s{ST+1}, 4096\n" if f == 4 else "")
            out.append((it, pre + f"buffer_load_dwordx4 {vr(ofs(s) + f*4, 4)}, v{V_L16}, {W}, s{ST+1} offen offset:{(f%4)*1024} sc1"))
        return out
    def emit(l):
        for tag, x in l: a(x); q.issue(tag)
    emit(items(('o', 0)))
    stamp(a, 'g2a')
    a(f"s_waitcnt vmcnt({q.wait('st')})")
    stamp(a, 'stdone')
    a("s_barrier")
    flag_store(a, S2_F3F, 'f3')
    stamp(a, 'gb0')
    for it in G2_PRE: emit(items(it))
    def reads(s, f, buf):
        hh, ks = f // 2, f % 2
        out = []
        for blk in range(2):
            for tt in range(2):
                off = (32*hh + 16*ks + 8*tt)*64
                out.append(f"ds_read_b64_tr_b16 {vr(H.WF + buf*8 + blk*4 + 2*tt, 2)}, v{RAREG[blk]} offset:{off}")
        return out
    RAREG = [T + 0 + 16, T + 1 + 16]
    a(f"v_add_u32 v{RAREG[0]}, {REG[0]}, v{H.RA}")
    a(f"v_xor_b32 v{RAREG[1]}, 8192, v{H.RA}")
    a(f"v_add_u32 v{RAREG[1]}, {REG[0]}, v{RAREG[1]}")
    for x in reads(0, 0, 0): a(x)
    a(f"s_waitcnt vmcnt({q.wait(('o', 0))})")
    for s in range(8):
        acc_ = H.ACCB if s < 4 else H.ACCA
        todo = []
        for it in G2_SCHED.get(s, []):
            if it == 'chk':
                n = q.wait('poll') if 'poll' in q.q else 63
                spin_poll(a, R.PL, H.FQ, S_WS, S2_F3P, 'f3', first=min(n, 63))
                stamp(a, 'f3ok')
            else: todo += items(it)
        for f in range(8):
            buf = f % 2
            if f == 7 and s < 7:
                n = 63
                for tag in (('o', s+1), ('w', s+1)):
                    if tag in q.q: n = min(n, q.wait(tag))
                a(f"s_waitcnt vmcnt({n}) lgkmcnt(0)" if n < 63 else "s_waitcnt lgkmcnt(0)")
                a("s_barrier")
                d = (REG[s+1] - REG[s]) & 0xffffffff
                a(f"v_add_u32 v{RAREG[0]}, 0x{d:x}, v{RAREG[0]}")
                a(f"v_add_u32 v{RAREG[1]}, 0x{d:x}, v{RAREG[1]}")
                nxt = reads(s+1, 0, buf^1)
            else:
                a("s_waitcnt lgkmcnt(0)")
                nxt = reads(s, f+1, buf^1) if f < 7 else []
            of = ofs(s) + f*4
            first = (s % 4 == 0 and f == 0)
            m = [m32(acc_+16*blk, H.WF + buf*8 + blk*4, of, None if first else acc_+16*blk) for blk in range(2)]
            if nxt: a(nxt[0]); a(nxt[1])
            a(m[0])
            if nxt: a(nxt[2]); a(nxt[3])
            a(m[1])
            k = (len(todo) + (7 - f) - 1) // (7 - f) if f < 7 else len(todo)
            emit(todo[:k]); todo = todo[k:]
        stamp(a, f'st{s}')
    stamp(a, 'g2end')
    a(f"s_lshl_b32 s{ST}, s{S_WV}, 12")
    a(f"v_add_u32 v{T}, s{ST}, v{V_L16}")
    a(f"s_xor_b32 s{ST}, s{ST}, 16384")
    a(f"v_add_u32 v{T+1}, s{ST}, v{V_L16}")
    a(f"v_sub_f32 v{T+2}, 1.0, v{H.GT}")
    a("s_nop 7")
    for r in range(32): a(f"v_mul_f32 v{H.ACCB+r}, v{T+2}, v{H.ACCB+r}")
    for r in range(32): a(f"v_fma_f32 v{H.ACCB+r}, v{H.GT}, v{H.ACCA+r}, v{H.ACCB+r}")
    for qq in range(4): a(f"ds_write_b128 v{T}, {vr(H.ACCB+16+4*qq,4)} offset:{qq*1024}")
    a("s_waitcnt lgkmcnt(0)")
    a("s_barrier")
    X = 64
    for qq in range(4): a(f"ds_read_b128 {vr(X+4*qq,4)}, v{T+1} offset:{qq*1024}")
    a("s_waitcnt lgkmcnt(0)")
    for r in range(16): a(f"v_add_f32 v{H.ACCB+r}, v{H.ACCB+r}, v{X+r}")
    P = X + 16
    for m in range(8): a(f"v_cvt_pk_bf16_f32 v{P+m}, v{H.ACCB+2*m}, v{H.ACCB+2*m+1}")
    a("s_nop 1")
    a(f"v_permlane32_swap_b32 v{P}, v{P+2}")
    a(f"v_permlane32_swap_b32 v{P+1}, v{P+3}")
    a(f"v_permlane32_swap_b32 v{P+4}, v{P+6}")
    a(f"v_permlane32_swap_b32 v{P+5}, v{P+7}")
    a("s_nop 1")
    for qq in range(2):
        a(f"buffer_store_dwordx4 {vr(P+4*qq,4)}, v{H.OV}, {SR(S_OUT)}, s{S2_OUT} offen offset:{32*qq}")

def gen_fused(kname, upto=3):
    a = Asm()
    gen_prologue(a, kname)
    gen_gemm1(a)
    gen_transition(a)
    q = VMQ()
    W = SR(S_WS)
    def poll2(a):
        if NO_POLL2: return
        a(f"buffer_load_dword v{R.PL}, v{H.FQ}, {W}, s{S2_F2P} offen sc1")
    def pre_combine(a):
        spin_poll(a, R.PL, H.FQ, S_WS, S2_F2P, 'f2')
        a(f"buffer_load_dword v{H.GT}, v{H.FP}, {W}, s{S2_GOF} offen sc1"); q.issue('g')
    f2 = lambda a: flag_store(a, S2_F2F, 'f2')
    if upto >= 3:
        gen_attention(a, {'f2': f2, 'poll2': poll2, 'pf': wo_prefetch, 'wo': (lambda s: [] if NO_WO else wo_dma(s))}, pre_combine)
        q.issue('st', 2)
        gen_gemm2(a, q)
    else:
        gen_attention(a, {'f2': f2, 'wo': lambda s: []})
    if STAMPS:
        a("s_waitcnt vmcnt(0)")
        stamp_flush(a, R.T + 4)
    a.label("L_end")
    a("s_endpgm")
    return a
```

```python
from asmlib import *
import math, struct
import gen1
from gen1 import f2u, kd, build_file, interleave, QSCALE, NAME

KA_X, KA_WQA, KA_WOA, KA_BX, KA_WQB, KA_WOB, KA_GW, KA_OUT, KA_DBG, KA_WS = [8*i for i in range(10)]
P_X, P_WQA, P_WOA, P_BX, P_WQB, P_WOB, P_GW, P_OUT, P_DBG, P_WS = [32 + 2*i for i in range(10)]
WS_SIZE = 268435456
WS_KV   = 0
WS_O    = 8 << 20
WS_HALO = 16 << 20
WS_G    = 18 << 20
WS_F1   = WS_G + 0x10000
WS_F2   = WS_G + 0x20000
WS_F3   = WS_G + 0x30000
WS_T    = 48 << 20
LDS_SIZE = 163840
SPIN_MAX = 1 << 15

S_A, S_B, S_WS, S_C = 4, 8, 12, 16
S_H, S_TB, S_WV, S_BR, S_TG, S_HH, S_NONCE, S_CNT = 20, 21, 22, 23, 24, 25, 26, 27
S_M0X, S_M0W, S_KX, S_KW = 28, 29, 30, 31
S_XR, S_WR, S_DX, S_DW, S_PX, S_PW, S_XI, S_CNEG = 52, 53, 54, 55, 56, 57, 58, 59
ST = 60
V_LANE, V_L16, V_ONE = 255, 254, 253

STAMPS = False
S_ST = 72
NST = 12
STAMP_SET = ['start','dma0','setup','bar0','g1end','x1','pipe','blk0','restart','loopend','gb0','g2end']
def stamp(a, name):
    if not STAMPS or name not in STAMP_SET: return
    i = STAMP_SET.index(name)
    a("s_memtime s[96:97]"); a("s_memrealtime s[98:99]"); a("s_waitcnt lgkmcnt(0)")
    a(f"s_mov_b32 s{S_ST+2*i}, s96"); a(f"s_mov_b32 s{S_ST+2*i+1}, s98")
def stamp_flush(a, vt):
    if not STAMPS: return
    a(f"s_cmp_lg_u32 s{S_WV}, 0")
    a(f"s_cbranch_scc1 L_st_skip")
    a(f"s_lshl_b32 s96, s2, 7")
    a(f"s_add_u32 s96, s96, 0x{WS_T:x}")
    a(f"v_mov_b32 v{vt+1}, 0")
    for i in range(2*NST):
        a(f"v_mov_b32 v{vt}, s{S_ST+i}")
        a(f"buffer_store_dword v{vt}, v{vt+1}, s[{S_WS}:{S_WS+3}], s96 offen offset:{4*i}")
    a.label("L_st_skip")

def srd(a, s, ptr, size):
    a(f"s_mov_b32 s{s}, s{ptr}"); a(f"s_mov_b32 s{s+1}, s{ptr+1}")
    a(f"s_mov_b32 s{s+2}, 0x{size:x}"); a(f"s_mov_b32 s{s+3}, 0x20000")
def SR(s): return f"s[{s}:{s+3}]"

def m32(D, A, B, C):
    c = vr(C, 16) if C is not None else '0'
    return f"v_mfma_f32_32x32x16_bf16 {vr(D,16)}, {vr(A,4)}, {vr(B,4)}, {c}"

class VMQ:
    def __init__(self): self.q = []
    def issue(self, tag, n=1): self.q += [tag]*n
    def wait(self, tag):
        idx = max(i for i, t in enumerate(self.q) if t == tag)
        n = len(self.q) - 1 - idx
        self.q = self.q[idx+1:]
        return n

LX = 0; LW = 98304
PF_D = 5
PRIO = True
class G:
    ACC = 0; XF = 96; WF = 112
    XA = 136; WA = 144; XD = 145; WD = 149; PX = 152; PW = 153; PD = 154
    GX = 156; GWV = 164
    GO = 172
    T = 174
def acc(f, b): return G.ACC + (f*3+b)*16
def xf(buf, f): return G.XF + (buf*2+f)*4
def wf(buf, b): return G.WF + (buf*3+b)*4

def g1_reads(s, buf):
    X = [f"ds_read_b128 {vr(xf(buf,f),4)}, v{G.XA+f*4+s}" for f in range(2)]
    W = [f"ds_read_b64_tr_b16 {vr(wf(buf,b)+2*tt,2)}, v{G.WA} offset:{s*3072 + b*1024 + tt*256}" for b in range(3) for tt in range(2)]
    return [X[0]] + W + [X[1]]
def g1_mfmas(buf, zero=False):
    m = []
    for f in range(2):
        for b in range(3):
            A, B = (wf(buf,b), xf(buf,f)) if b < 2 else (xf(buf,f), wf(buf,b))
            m.append(m32(acc(f,b), A, B, None if zero else acc(f,b)))
    return m
def dma_w():
    d = [f"s_add_u32 m0, s{S_M0W}, s{S_WR}\ns_nop 0\nbuffer_load_dwordx4 v{G.WD}, {SR(S_B)}, s{S_KW} offen lds"]
    for b in (1, 2): d.append(f"buffer_load_dwordx4 v{G.WD+b}, {SR(S_B)}, s{S_KW} offen offset:{b*1024} lds")
    d[-1] += f"\ns_add_u32 s{S_KW}, s{S_KW}, {64*6144}\ns_xor_b32 s{S_WR}, s{S_WR}, 24576"
    return d
def dma_x():
    d = [f"s_add_u32 m0, s{S_M0X}, s{S_XR}\ns_nop 0\nbuffer_load_dwordx4 v{G.XD}, {SR(S_A)}, s{S_KX} offen lds"]
    for j in (1, 2, 3): d.append(f"buffer_load_dwordx4 v{G.XD+j}, {SR(S_A)}, s{S_KX} offen offset:{j*1024} lds")
    d[-1] += (f"\ns_add_u32 s{S_KX}, s{S_KX}, 128\ns_add_u32 s{S_XR}, s{S_XR}, 32768\n"
              f"s_cmp_eq_u32 s{S_XR}, 98304\ns_cselect_b32 s{S_XR}, 0, s{S_XR}")
    return d
def pf():
    return [f"buffer_load_dword v{G.PD}, v{G.PX}, {SR(S_A)}, s{S_PX} offen",
            f"buffer_load_dword v{G.PD+1}, v{G.PW}, {SR(S_B)}, s{S_PW} offen\n"
            f"s_add_u32 s{S_PX}, s{S_PX}, 128\ns_min_u32 s{S_PX}, s{S_PX}, {15*128}\n"
            f"s_add_u32 s{S_PW}, s{S_PW}, {64*6144}\ns_min_u32 s{S_PW}, s{S_PW}, {15*64*6144}"]
def addr_adv():
    return [f"v_add_u32 v{G.XA+i}, s{S_DX}, v{G.XA+i}" for i in range(8)] + [f"v_add_u32 v{G.WA}, s{S_DW}, v{G.WA}"]
def adv_deltas(a):
    a(f"s_add_u32 s{S_XI}, s{S_XI}, 1")
    a(f"s_cmp_eq_u32 s{S_XI}, 3")
    a(f"s_cselect_b32 s{S_XI}, 0, s{S_XI}")
    a(f"s_cmp_eq_u32 s{S_XI}, 2")
    a(f"s_cselect_b32 s{S_DX}, s{S_CNEG}, s{ST+11}")
    a(f"s_sub_u32 s{S_DW}, 0, s{S_DW}")

G1_SPREAD = True
G1_PLAN = [[('x', 2), ('x', 4)], [('x', 2), ('x', 4)], [('p', 2), ('p', 4)], [('w', 2), ('w', 3), ('w', 4)]]
def g1_substep(a, buf, nxt, extra, pre_wait, zero=False, vm=()):
    m = g1_mfmas(buf, zero)
    nr = 8
    need = [3, 5, 7, 8, 8, 8]
    per = [3, 3, 2, 0, 0, 0] if nxt else [0]*6
    issued = 0; k = 0; waited = 0
    ex = list(extra); vm = list(vm)
    for i in range(6):
        if not pre_wait and need[i] > waited:
            a(f"s_waitcnt lgkmcnt({min(nr - need[i] + issued, 15)})"); waited = need[i]
        a(m[i])
        for _ in range(per[i]):
            if k < len(nxt): a(nxt[k]); k += 1; issued += 1
        for p_, x_ in vm:
            if p_ == i: a(x_)
        if i >= 2:
            take = (len(ex) + (5 - i)) // (6 - i) if i < 5 else len(ex)
            for _ in range(take): a(ex.pop(0))

def g1_step(a, kind, early=(), post=None):
    early = list(early)
    for s in range(4):
        buf = s % 2
        if s < 3:
            ex = []; vm = []
            if s < 2 and early:
                h = (len(early) + (1 - s)) // (2 - s)
                ex = early[:h]; early = early[h:]
            if s == 2 and kind != 'last': ex = addr_adv()
            if G1_SPREAD and kind == 'loop':
                if s == 0: src = {'x': dma_x(), 'p': pf()}
                vm = [(p_, src[k_].pop(0)) for k_, p_ in G1_PLAN[s]]
            g1_substep(a, buf, g1_reads(s+1, buf^1), ex, False, zero=(kind == 'first' and s == 0), vm=vm)
        else:
            nxt = []; ex = []; vm = []
            if kind == 'last':
                a("s_waitcnt lgkmcnt(0)")
                a("s_barrier")
            else:
                n = {'first': 4 + 2*(PF_D-2), 'loop': 6, 'w': 6, 'none': 0}[kind]
                a(f"s_waitcnt vmcnt({n}) lgkmcnt(0)")
                a("s_barrier")
                nxt = g1_reads(0, buf^1)
                if G1_SPREAD:
                    if kind in ('first', 'loop'):
                        dw = dma_w(); vm = [(p_, dw.pop(0)) for k_, p_ in G1_PLAN[3]]
                else:
                    if kind in ('first', 'loop', 'w'): ex += dma_w()
                    if kind in ('first', 'loop'): ex += dma_x() + pf()
                if kind == 'none': ex += (gate_store() if G1_SPREAD else []) + nonce_load()
            g1_substep(a, buf, nxt, ex, True, vm=vm)
    if post: post(a)

def nonce_load():
    return [f"buffer_load_dword v{G.PD}, v{V_ONE}, {SR(S_C)}, 0 offen sc1"]

def gate_math(a):
    T = G.T
    a(f"v_mov_b32 v{T}, 0")
    for i in range(8): a(f"v_dot2_f32_bf16 v{T}, v{G.GX+i}, v{G.GWV+i}, v{T}")
    a("s_nop 2")
    for sh in (1, 2, 4, 8):
        a("s_nop 1")
        a(f"v_add_f32_dpp v{T}, v{T}, v{T} row_shr:{sh} row_mask:0xf bank_mask:0xf bound_ctrl:0")
    a("s_nop 1")
    for k in range(4): a(f"v_readlane_b32 s{ST+k}, v{T}, {16*k+15}")
    a("s_nop 1")
    a(f"v_mov_b32 v{T}, s{ST}")
    for k in range(1, 4): a(f"v_add_f32 v{T}, s{ST+k}, v{T}")
    a(f"v_mul_f32 v{T}, 0x{f2u(-math.log2(math.e)):x}, v{T}")
    a(f"v_exp_f32 v{T}, v{T}")
    a("s_nop 0")
    a(f"v_add_f32 v{T}, 1.0, v{T}")
    a(f"v_rcp_f32 v{T}, v{T}")
    a("s_nop 0")
    if not G1_SPREAD:
        for x in gate_store(): a(x)
def gate_store(): return [f"buffer_store_dword v{G.T}, v{V_ONE}, {SR(S_WS)}, s{ST+8} offen sc1"]

def gen_prologue(a, kname):
    T = G.T
    a.label(kname)
    a("s_cmp_ge_u32 s2, 256")
    a("s_cbranch_scc1 L_end")
    stamp(a, 'start')
    a("s_load_dwordx16 s[32:47], s[0:1], 0")
    a("s_load_dwordx4 s[48:51], s[0:1], 64")
    a(f"s_and_b32 s{ST}, s2, 7")
    a(f"s_lshr_b32 s{ST+1}, s2, 3")
    a(f"s_and_b32 s{S_HH}, s{ST+1}, 3")
    a(f"s_lshl_b32 s{ST}, s{ST}, 2")
    a(f"s_add_u32 s{S_H}, s{ST}, s{S_HH}")
    a(f"s_lshr_b32 s{S_TB}, s{ST+1}, 2")
    a(f"v_lshrrev_b32 v{T}, 6, v0")
    a(f"v_and_b32 v{V_LANE}, 63, v0")
    a(f"v_readfirstlane_b32 s{S_WV}, v{T}")
    a(f"v_lshlrev_b32 v{V_L16}, 4, v{V_LANE}")
    a(f"v_mov_b32 v{T+1}, 0x7fffff00")
    a(f"v_cmp_eq_u32 vcc, 0, v{V_LANE}")
    a(f"s_lshr_b32 s{S_BR}, s{S_WV}, 2")
    a(f"s_and_b32 s{S_TG}, s{S_WV}, 3")
    a(f"v_cndmask_b32_e64 v{V_ONE}, v{T+1}, 0, vcc")
    L = V_LANE
    a(f"v_lshrrev_b32 v{T}, 2, v{L}")
    a(f"s_lshl_b32 s{ST}, s{S_TG}, 4")
    a(f"v_add_u32 v{T}, s{ST}, v{T}")
    a(f"s_movk_i32 s{ST}, 6144")
    a(f"v_mul_lo_u32 v{T}, v{T}, s{ST}")
    a(f"v_and_b32 v{T+1}, 3, v{L}")
    a(f"v_lshlrev_b32 v{T+1}, 4, v{T+1}")
    a(f"s_lshl_b32 s{ST}, s{S_H}, 6")
    a(f"v_add3_u32 v{G.WD}, v{T}, v{T+1}, s{ST}")
    a(f"v_add_u32 v{G.WD+1}, 1024, v{G.WD}")
    a(f"v_add_u32 v{G.WD+2}, 2048, v{G.WD}")
    a(f"s_mul_i32 s{ST}, s{S_BR}, 12288")
    a(f"s_mul_i32 s{ST+1}, s{S_TG}, 3072")
    a(f"s_add_u32 s{S_M0W}, s{ST}, s{ST+1}")
    a(f"s_add_u32 s{S_M0W}, s{S_M0W}, {LW}")
    a(f"v_lshrrev_b32 v{T}, 3, v{L}")
    a(f"s_lshl_b32 s{ST}, s{S_TG}, 5")
    a(f"v_add_u32 v{T}, s{ST}, v{T}")
    a(f"v_lshlrev_b32 v{T}, 1, v{T}")
    a(f"s_lshl_b32 s{ST}, s{S_TB}, 8")
    a(f"s_add_u32 s{ST}, s{ST}, s{S_BR}")
    a(f"v_add_u32 v{T}, s{ST}, v{T}")
    a(f"v_lshlrev_b32 v{T}, 11, v{T}")
    a(f"v_and_b32 v{T+1}, 7, v{L}")
    a(f"v_lshrrev_b32 v{T+2}, 4, v{L}")
    a(f"v_xor_b32 v{T+1}, v{T+1}, v{T+2}")
    a(f"v_xor_b32 v{T+2}, 4, v{T+1}")
    a(f"v_lshlrev_b32 v{T+1}, 4, v{T+1}")
    a(f"v_lshlrev_b32 v{T+2}, 4, v{T+2}")
    for j in range(4):
        src = T+1 if j % 2 == 0 else T+2
        a(f"v_add_u32 v{G.XD+j}, v{T}, v{src}")
        if j: a(f"v_add_u32 v{G.XD+j}, {j*(16*2048 - 1024)}, v{G.XD+j}")
    a(f"s_lshl_b32 s{S_M0X}, s{S_WV}, 12")
    for s_ in (S_KX, S_KW, S_XR, S_WR): a(f"s_mov_b32 s{s_}, 0")
    a("s_waitcnt lgkmcnt(0)")
    srd(a, S_A, P_X, 2048*2048)
    a(f"s_cmp_eq_u32 s{S_BR}, 0")
    a(f"s_cselect_b32 s{S_B}, s{P_WQA}, s{P_WQB}")
    a(f"s_cselect_b32 s{S_B+1}, s{P_WQA+1}, s{P_WQB+1}")
    a(f"s_mov_b32 s{S_B+2}, 0x{1024*6144:x}")
    a(f"s_mov_b32 s{S_B+3}, 0x20000")
    for x in dma_w() + dma_x(): a(x)
    stamp(a, 'dma0')
    if PRIO:
        a(f"s_cmp_ge_u32 s{S_WV}, 4")
        a("s_cbranch_scc0 L_prio")
        a("s_setprio 1")
        a.label("L_prio")
    srd(a, S_WS, P_WS, WS_SIZE)
    srd(a, S_C, P_DBG, 256)
    a(f"s_or_b32 s{ST}, s2, s{S_WV}")
    a(f"s_cmp_lg_u32 s{ST}, 0")
    a("s_cbranch_scc1 L_nononce")
    a(f"s_memrealtime s[{ST}:{ST+1}]")
    a("s_waitcnt lgkmcnt(0)")
    a(f"s_or_b32 s{ST}, s{ST}, 1")
    a(f"v_mov_b32 v{T}, s{ST}")
    a(f"buffer_store_dword v{T}, v{V_ONE}, {SR(S_C)}, 0 offen sc1")
    a.label("L_nononce")
    a(f"s_lshr_b32 s{ST}, s{S_H}, 2")
    a(f"s_lshl_b32 s{ST+1}, s{S_HH}, 3")
    a(f"s_add_u32 s{ST+1}, s{ST+1}, s{S_WV}")
    a(f"s_lshl_b32 s{ST+2}, s{S_TB}, 3")
    a(f"s_add_u32 s{ST+2}, s{ST+2}, s{ST}")
    a(f"s_lshl_b32 s{ST+8}, s{ST+2}, 5")
    a(f"s_add_u32 s{ST+8}, s{ST+8}, s{ST+1}")
    a(f"s_lshl_b32 s{ST+8}, s{ST+8}, 2")
    a(f"s_add_u32 s{ST+8}, s{ST+8}, 0x{WS_G:x}")
    a(f"s_and_b32 s{ST+2}, s{ST}, 3")
    a(f"s_lshl_b32 s{ST+2}, s{ST+2}, 5")
    a(f"s_add_u32 s{ST+2}, s{ST+2}, s{ST+1}")
    a(f"s_lshl_b32 s{ST+2}, s{ST+2}, 1")
    a(f"s_lshr_b32 s{ST+3}, s{ST}, 2")
    a(f"s_add_u32 s{ST+2}, s{ST+2}, s{ST+3}")
    a(f"s_lshl_b32 s{ST+3}, s{S_TB}, 8")
    a(f"s_add_u32 s{ST+2}, s{ST+2}, s{ST+3}")
    a(f"s_lshl_b32 s{ST+2}, s{ST+2}, 11")
    a(f"s_mov_b32 s{ST+4}, s{P_GW}"); a(f"s_mov_b32 s{ST+5}, s{P_GW+1}")
    a(f"s_mov_b32 s{ST+6}, 2048"); a(f"s_mov_b32 s{ST+7}, 0x20000")
    a(f"v_lshlrev_b32 v{G.GO}, 5, v{L}")
    for q in range(2): a(f"buffer_load_dwordx4 {vr(G.GX+4*q,4)}, v{G.GO}, {SR(S_A)}, s{ST+2} offen offset:{16*q}")
    for q in range(2): a(f"buffer_load_dwordx4 {vr(G.GWV+4*q,4)}, v{G.GO}, {SR(ST+4)}, 0 offen offset:{16*q}")
    a(f"s_lshl_b32 s{ST}, s{S_TB}, 8")
    a(f"s_lshl_b32 s{ST+1}, s{S_HH}, 6")
    a(f"s_add_u32 s{ST}, s{ST}, s{ST+1}")
    a(f"s_lshl_b32 s{ST+1}, s{S_WV}, 3")
    a(f"s_add_u32 s{ST}, s{ST}, s{ST+1}")
    a(f"v_add_u32 v{T}, s{ST}, v{L}")
    a(f"v_lshlrev_b32 v{G.PX}, 11, v{T}")
    a(f"v_mov_b32 v{T+1}, 0x7fffff00")
    a(f"v_cmp_gt_u32 vcc, 8, v{L}")
    a(f"s_lshl_b32 s{ST}, s{S_TB}, 3")
    a(f"s_and_b32 s{ST+1}, s{S_HH}, 1")
    a(f"s_lshl_b32 s{ST+1}, s{ST+1}, 2")
    a(f"s_add_u32 s{ST}, s{ST}, s{ST+1}")
    a(f"s_add_u32 s{ST}, s{ST}, s{S_TG}")
    a(f"s_mul_i32 s{ST}, s{ST}, 6144")
    a(f"v_cndmask_b32 v{G.PX}, v{T+1}, v{G.PX}, vcc")
    a(f"s_lshr_b32 s{ST+1}, s{S_H}, 1")
    a(f"s_lshl_b32 s{ST+1}, s{ST+1}, 7")
    a(f"s_add_u32 s{ST}, s{ST}, s{ST+1}")
    a(f"v_lshlrev_b32 v{T}, 11, v{L}")
    a(f"v_add_u32 v{G.PW}, s{ST}, v{T}")
    a(f"v_cmp_gt_u32 vcc, 3, v{L}")
    a(f"s_mov_b32 s{S_PX}, {2*128}")
    a(f"s_mov_b32 s{S_PW}, {2*64*6144}")
    a(f"v_cndmask_b32 v{G.PW}, v{T+1}, v{G.PW}, vcc")
    a(f"v_and_b32 v{T}, 31, v{L}")
    a(f"v_lshrrev_b32 v{T+1}, 5, v{L}")
    a(f"v_lshrrev_b32 v{T+2}, 1, v{T}")
    a(f"v_and_b32 v{T+2}, 7, v{T+2}")
    a(f"v_xor_b32 v{T+1}, v{T+1}, v{T+2}")
    a(f"v_lshlrev_b32 v{T+1}, 4, v{T+1}")
    a(f"v_lshlrev_b32 v{T}, 7, v{T}")
    a(f"v_add_u32 v{T}, v{T}, v{T+1}")
    a(f"s_lshl_b32 s{ST}, s{S_TG}, 13")
    a(f"v_add_u32 v{T}, s{ST}, v{T}")
    a(f"s_lshl_b32 s{ST}, s{S_BR}, 12")
    a(f"s_xor_b32 s{ST+1}, s{ST}, 4096")
    for s in range(4):
        a(f"v_xor_b32 v{T+1}, {32*s}, v{T}")
        a(f"v_add_u32 v{G.XA+s}, s{ST}, v{T+1}")
        a(f"v_add_u32 v{G.XA+4+s}, s{ST+1}, v{T+1}")
    a(f"v_lshrrev_b32 v{T}, 5, v{L}")
    a(f"v_lshlrev_b32 v{T}, 9, v{T}")
    a(f"v_bfe_u32 v{T+1}, v{L}, 2, 2")
    a(f"v_lshlrev_b32 v{T+1}, 6, v{T+1}")
    a(f"v_bfe_u32 v{T+2}, v{L}, 4, 1")
    a(f"v_lshlrev_b32 v{T+2}, 5, v{T+2}")
    a(f"v_add3_u32 v{T}, v{T}, v{T+1}, v{T+2}")
    a(f"v_and_b32 v{T+1}, 3, v{L}")
    a(f"v_lshlrev_b32 v{T+1}, 3, v{T+1}")
    a(f"s_mul_i32 s{ST}, s{S_BR}, 12288")
    a(f"s_add_u32 s{ST}, s{ST}, {LW}")
    a(f"v_add3_u32 v{G.WA}, v{T}, v{T+1}, s{ST}")
    for x in dma_w() + dma_x(): a(x)
    g2_setup_v(a, T)
    a(f"s_mov_b32 s{S_DX}, 32768")
    a(f"s_mov_b32 s{S_DW}, 24576")
    a(f"s_mov_b32 s{S_XI}, 0")
    a(f"s_mov_b32 s{S_CNEG}, 0x{(-65536) & 0xffffffff:x}")
    a(f"s_mov_b32 s{ST+11}, 32768")
    stamp(a, 'setup')
    a("s_waitcnt vmcnt(11)")
    a("s_barrier")
    stamp(a, 'bar0')
    for x in g1_reads(0, 0): a(x)

def gen_gemm1(a):
    early = dma_x()
    for u in range(2, PF_D): early += pf()
    g1_step(a, 'first', early, post=gate_math)
    adv_deltas(a)
    a(f"s_mov_b32 s{S_CNT}, {13 if G1_SPREAD else 12}")
    a.label("L_g1_loop")
    g1_step(a, 'loop')
    adv_deltas(a)
    a(f"s_sub_u32 s{S_CNT}, s{S_CNT}, 1")
    a(f"s_cmp_lg_u32 s{S_CNT}, 0")
    a("s_cbranch_scc1 L_g1_loop")
    if not G1_SPREAD:
        g1_step(a, 'w'); adv_deltas(a)
    g1_step(a, 'none')
    g1_step(a, 'last')
    stamp(a, 'g1end')

L_STASH = 98304
L_QX    = 147456
S_BO, S_KVB, S_RN, S_RING, S_N, S_M0R, S_T0, S_OBD, S_OAD, S_NOPREV, S_HALO, S_QS = 28, 29, 30, 31, 52, 53, 54, 55, 56, 57, 58, 59
class R:
    OA = 0; OB = 16; LA = 32; LB = 36; SEL = 40; IDX = 44; A0 = 45; A1 = 46; DM = 47
    NMA = 48; NMB = 64
    SA = [80, 96]; SB = [112, 144]
    QA = 128; QB = 136
    UK = [160, 176]; UV = [168, 184]
    T = 192
    KP = 208; VP = 216; LB16 = 220; PL = 221; PV_ = 222
    LP = 223
FORCE_FALLBACK = False
uid = [0]
def spin_poll(a, dst, voff, srd_, soff, tag, first=0):
    a(f"s_mov_b32 s{ST}, {SPIN_MAX}")
    a(f"s_waitcnt vmcnt({first})")
    a(f"s_branch L_poll_{tag}_chk")
    a.label(f"L_poll_{tag}")
    a("s_waitcnt vmcnt(0)")
    a.label(f"L_poll_{tag}_chk")
    a(f"v_cmp_ne_u32 vcc, s{S_NONCE}, v{dst}")
    a("s_nop 4")
    a(f"s_cbranch_vccz L_poll_{tag}_ok")
    a(f"s_sub_u32 s{ST}, s{ST}, 1")
    a(f"s_cmp_eq_u32 s{ST}, 0")
    a(f"s_cbranch_scc1 L_poll_{tag}_ok")
    a("s_sleep 2")
    a(f"buffer_load_dword v{dst}, v{voff}, {SR(srd_)}, s{soff} offen sc1")
    a(f"s_branch L_poll_{tag}")
    a.label(f"L_poll_{tag}_ok")

def pack(a, base, dst, scale=None):
    for m in range(8):
        if scale is not None:
            a(f"v_mul_f32 v{base+2*m}, s{scale}, v{base+2*m}")
            a(f"v_mul_f32 v{base+2*m+1}, s{scale}, v{base+2*m+1}")
        a(f"v_cvt_pk_bf16_f32 v{dst+m}, v{base+2*m}, v{base+2*m+1}")

def gen_transition(a):
    T = R.T; L = V_LANE
    W = SR(S_WS)
    a(f"s_mov_b32 s{S_QS}, 0x{f2u(QSCALE):x}")
    a(f"v_and_b32 v{T}, 0x33, v{L}")
    a(f"v_lshrrev_b32 v{T+1}, 1, v{L}")
    a(f"v_and_b32 v{T+1}, 4, v{T+1}")
    a(f"v_or_b32 v{T}, v{T}, v{T+1}")
    a(f"v_lshlrev_b32 v{T+1}, 1, v{L}")
    a(f"v_and_b32 v{T+1}, 8, v{T+1}")
    a(f"v_or_b32 v{T}, v{T}, v{T+1}")
    a(f"v_lshlrev_b32 v{R.LP}, 4, v{T}")
    a(f"s_lshl_b32 s{S_T0}, s{S_TB}, 3")
    a(f"s_lshl_b32 s{ST}, s{S_TG}, 1")
    a(f"s_add_u32 s{ST}, s{ST}, s{S_BR}")
    a(f"s_add_u32 s{S_T0}, s{S_T0}, s{ST}")
    a(f"s_lshl_b32 s{S_KVB}, s{S_H}, 18")
    if WS_KV: a(f"s_add_u32 s{S_KVB}, s{S_KVB}, 0x{WS_KV:x}")
    a(f"s_lshl_b32 s{S_OAD}, s{S_T0}, 6")
    a(f"s_add_u32 s{S_OAD}, s{S_OAD}, s{S_H}")
    a(f"s_lshl_b32 s{S_OAD}, s{S_OAD}, 11")
    a(f"s_add_u32 s{S_OAD}, s{S_OAD}, 0x{WS_O:x}")
    a(f"s_add_u32 s{S_OBD}, s{S_OAD}, {32*2048}")
    a(f"s_cmp_lg_u32 s{S_BR}, 0")
    a("s_cbranch_scc1 L_tr_b")
    a(f"s_lshl_b32 s{ST+1}, s{S_T0}, 12")
    a(f"s_add_u32 s{ST+1}, s{ST+1}, s{S_KVB}")
    a(f"s_lshl_b32 s{ST+2}, s{S_TG}, 13")
    a(f"v_add_u32 v{T}, s{ST+2}, v{R.LP}")
    a(f"v_add_u32 v{T+1}, s{ST+2}, v{V_L16}")
    a(f"s_lshl_b32 s{ST+3}, s{S_TG}, 12")
    a(f"s_add_u32 s{ST+3}, s{ST+3}, {L_QX}")
    a(f"v_add_u32 v{T+2}, s{ST+3}, v{V_L16}")
    a(f"s_add_u32 s{ST+4}, s{ST+1}, 4096")
    a("s_nop 4")
    P = 96
    for f in range(2):
        so = ST+1 if f == 0 else ST+4
        pk = P + f*16; pv = pk + 8
        pack(a, acc(f,1), pk)
        for ks in range(2):
            a(f"buffer_store_dwordx4 {vr(pk+4*ks,4)}, v{R.LP}, {W}, s{so} offen offset:{ks*1024} sc1")
        pack(a, acc(f,2), pv)
        for s in range(2):
            a(f"buffer_store_dwordx4 {vr(pv+4*s,4)}, v{V_L16}, {W}, s{so} offen offset:{2048+s*1024} sc1")
        for ks in range(2): a(f"ds_write_b128 v{T}, {vr(pk+4*ks,4)} offset:{f*4096 + ks*1024}")
        for s in range(2): a(f"ds_write_b128 v{T+1}, {vr(pv+4*s,4)} offset:{f*4096 + 2048 + s*1024}")
    for f in range(2):
        q = R.QA if f == 0 else R.QB
        pack(a, acc(f,0), q, S_QS)
        for ks in range(2): a(f"ds_write_b128 v{T+2}, {vr(q+4*ks,4)} offset:{f*2048 + ks*1024}")
    a("s_branch L_tr_join")
    a.label("L_tr_b")
    a(f"s_mul_i32 s{ST+1}, s{S_TG}, 12288")
    a(f"s_add_u32 s{ST+1}, s{ST+1}, {L_STASH}")
    a(f"v_add_u32 v{T}, s{ST+1}, v{R.LP}")
    a(f"v_add_u32 v{T+1}, s{ST+1}, v{V_L16}")
    a(f"s_lshl_b32 s{ST+2}, s{S_H}, 3")
    a(f"s_add_u32 s{ST+2}, s{ST+2}, s{S_TB}")
    a(f"s_lshl_b32 s{ST+2}, s{ST+2}, 1")
    a(f"s_lshr_b32 s{ST+3}, s{S_TG}, 1")
    a(f"s_add_u32 s{ST+2}, s{ST+2}, s{ST+3}")
    a(f"s_lshl_b32 s{ST+2}, s{ST+2}, 12")
    a(f"s_add_u32 s{ST+2}, s{ST+2}, 0x{WS_HALO:x}")
    a("s_nop 2")
    for f in range(2):
        off = 6144 if f == 0 else 0
        pk = P + f*24; pv = pk + 8; pq = pk + 16
        pack(a, acc(f,1), pk)
        pack(a, acc(f,2), pv)
        if f == 0:
            a(f"s_bitcmp1_b32 s{S_TG}, 0")
            a("s_cbranch_scc0 L_tr_nohalo")
            for ks in range(2):
                a(f"buffer_store_dwordx4 {vr(pk+4*ks,4)}, v{R.LP}, {W}, s{ST+2} offen offset:{ks*1024} sc1")
            a(f"buffer_store_dwordx4 {vr(pv+4,4)}, v{V_L16}, {W}, s{ST+2} offen offset:2048 sc1")
            a.label("L_tr_nohalo")
        for ks in range(2): a(f"ds_write_b128 v{T}, {vr(pk+4*ks,4)} offset:{off + 2048 + ks*1024}")
        for s in range(2): a(f"ds_write_b128 v{T+1}, {vr(pv+4*s,4)} offset:{off + 4096 + s*1024}")
        pack(a, acc(f,0), pq, S_QS)
        for ks in range(2): a(f"ds_write_b128 v{T+1}, {vr(pq+4*ks,4)} offset:{off + ks*1024}")
    a.label("L_tr_join")
    a("s_waitcnt vmcnt(8)")
    a(f"s_cmp_lg_u32 s{S_BR}, 0")
    a("s_cbranch_scc0 L_tr_n0")
    a("s_waitcnt vmcnt(3)")
    a(f"s_bitcmp1_b32 s{S_TG}, 0")
    a("s_cbranch_scc1 L_tr_n0")
    a("s_waitcnt vmcnt(0)")
    a.label("L_tr_n0")
    a(f"v_readfirstlane_b32 s{S_NONCE}, v{G.PD}")
    a(f"s_mov_b32 s{ST}, {SPIN_MAX}")
    a.label("L_nonce_poll")
    a(f"s_cmp_lg_u32 s{S_NONCE}, 0")
    a("s_cbranch_scc1 L_nonce_ok")
    a(f"s_sub_u32 s{ST}, s{ST}, 1")
    a(f"s_cmp_eq_u32 s{ST}, 0")
    a("s_cbranch_scc1 L_nonce_ok")
    a(f"buffer_load_dword v{G.PD}, v{V_ONE}, {SR(S_C)}, 0 offen sc1")
    a("s_waitcnt vmcnt(0)")
    a(f"v_readfirstlane_b32 s{S_NONCE}, v{G.PD}")
    a("s_branch L_nonce_poll")
    a.label("L_nonce_ok")
    g2_srds(a)
    a(f"v_mov_b32 v{R.IDX}, 0xdddddddd")
    a(f"v_bfe_u32 v{T}, v{L}, 2, 1")
    a(f"v_mov_b32 v{T+1}, 0x3f803f80")
    a(f"v_mul_lo_u32 v{R.SEL+2}, v{T}, v{T+1}")
    a(f"v_sub_u32 v{R.SEL}, v{T+1}, v{R.SEL+2}")
    a(f"v_mov_b32 v{R.SEL+3}, v{R.SEL+2}")
    a(f"v_mov_b32 v{R.SEL+1}, v{R.SEL}")
    a(f"s_lshl_b32 s{S_M0R}, s{S_WV}, 12")
    a(f"v_add_u32 v{R.DM}, s{S_M0R}, v{V_L16}")
    a(f"s_lshl_b32 s{ST}, s{S_BR}, 14")
    a(f"v_add_u32 v{R.LB16}, s{ST}, v{V_L16}")
    a(f"v_mov_b32 v{R.A0}, v{R.LB16}")
    a(f"v_add_u32 v{R.A1}, 32768, v{R.LB16}")
    a(f"s_mov_b32 s{S_RING}, 32768")
    a(f"s_add_u32 s{S_BO}, s{S_TB}, 1")
    a(f"s_and_b32 s{S_BO}, s{S_BO}, 7")
    a(f"s_lshl_b32 s{S_BO}, s{S_BO}, 15")
    a(f"s_mov_b32 s{S_RN}, 32768")
    a(f"v_and_b32 v{R.PV_}, 7, v{L}")
    a(f"v_lshlrev_b32 v{R.PV_}, 8, v{R.PV_}")
    if F1_EARLY:
        a(f"s_lshl_b32 s{ST+2}, s{S_H}, 11")
        a(f"s_add_u32 s{ST+2}, s{ST+2}, 0x{WS_F1:x}")
        a(f"s_lshl_b32 s{ST+3}, s{S_TB}, 8")
        a(f"s_add_u32 s{ST+3}, s{ST+3}, s{ST+2}")
        a("s_waitcnt vmcnt(0) lgkmcnt(0)")
        a("s_barrier")
        flag_store(a, ST+3, 'f1')
    else:
        a("s_waitcnt lgkmcnt(0)")
        a("s_barrier")
    stamp(a, 'x1')
    a(f"s_cmp_eq_u32 s{S_BR}, 0")
    a("s_cbranch_scc1 L_tr_haveq")
    a(f"s_lshl_b32 s{ST}, s{S_TG}, 12")
    a(f"s_add_u32 s{ST}, s{ST}, {L_QX}")
    a(f"v_add_u32 v{T}, s{ST}, v{V_L16}")
    for ks in range(2): a(f"ds_read_b128 {vr(R.QA+4*ks,4)}, v{T} offset:{2048 + ks*1024}")
    for ks in range(2): a(f"ds_read_b128 {vr(R.QB+4*ks,4)}, v{T} offset:{ks*1024}")
    a.label("L_tr_haveq")

def sm32(D, A, B): return f"v_smfmac_f32_32x32x32_bf16 {vr(D,16)}, {vr(A,4)}, {vr(B,8)}, v{R.IDX}"
def sm16(D, B): return f"v_smfmac_f32_16x16x64_bf16 {vr(D,4)}, {vr(R.SEL,4)}, {vr(B,8)}, v{R.IDX}"
def max_chain(a, dst, regs):
    regs = list(regs)
    a(f"v_max3_f32 v{dst}, v{regs[0]}, v{regs[1]}, v{regs[2]}")
    k = 3
    while k < len(regs):
        if k + 1 < len(regs):
            a(f"v_max3_f32 v{dst}, v{dst}, v{regs[k]}, v{regs[k+1]}"); k += 2
        else:
            a(f"v_max_f32 v{dst}, v{dst}, v{regs[k]}"); k += 1
def cross_half(a, op, dst, tmp):
    a(f"v_mov_b32 v{tmp}, v{dst}")
    a("s_nop 1")
    a(f"v_permlane32_swap_b32 v{dst}, v{tmp}")
    a("s_nop 1")
    a(f"{op} v{dst}, v{dst}, v{tmp}")

POS = [0, 3, 6, 8, 11, 14]
def phase(a, exps, mats, extra=None):
    extra = extra or {}
    k = 0
    for i, e in enumerate(exps):
        for x in extra.get(i, []): a(x)
        while k < len(mats) and POS[k + (6 - len(mats))] <= i:
            a(mats[k]); k += 1
        a(e)
    while k < len(mats):
        a(mats[k]); k += 1
def phaseA(a, c):
    S = R.SA[c]
    mats = [m32(R.SB[c], R.UK[c^1], R.QB, R.NMB), m32(R.SB[c], R.UK[c^1]+4, R.QB+4, R.SB[c]),
            sm32(R.OB, R.UV[c^1], R.SB[c^1]), sm16(R.LB, R.SB[c^1]),
            sm32(R.OB, R.UV[c^1]+4, R.SB[c^1]+8), sm16(R.LB, R.SB[c^1]+8)]
    phase(a, [f"v_exp_f32 v{S+r}, v{S+r}" for r in range(16)], mats)
def phaseB(a, c, reads, pre=(), with_s=True, fill=()):
    S = R.SB[c]
    mats = []
    if with_s:
        mats += [m32(R.SA[c^1], R.UK[c], R.QA, R.NMA), m32(R.SA[c^1], R.UK[c]+4, R.QA+4, R.SA[c^1])]
    mats += [sm32(R.OA, R.UV[c], R.SA[c]), sm16(R.LA, R.SA[c]),
             sm32(R.OA, R.UV[c]+4, R.SA[c]+8), sm16(R.LA, R.SA[c]+8)]
    for x in pre: a(x)
    extra = {}
    for k, rd in enumerate(reads): extra.setdefault(2 + 2*k, []).append(rd)
    for k, d in enumerate(fill): extra.setdefault(min(1 + 2*k, 15), []).append(d)
    phase(a, [f"v_exp_f32 v{S+r}, v{S+r}" for r in range(16)], mats, extra)
def rdK(buf, areg, tile):
    return [f"ds_read_b128 {vr(R.UK[buf]+4*ks,4)}, v{areg} offset:{tile*4096 + ks*1024}" for ks in range(2)]
def rdV(buf, areg, tile):
    return [f"ds_read_b128 {vr(R.UV[buf]+4*s,4)}, v{areg} offset:{tile*4096 + 2048 + s*1024}" for s in range(2)]

RING_SC1 = True
NO_PF = False
NO_WO = False
NO_POLL2 = False
F1_AT = 3
F1_EARLY = True
D2_LATE = True
NO_RING = False
NO_BAR = False
def ring_dma():
    W = SR(S_WS)
    sc = "sc1 " if RING_SC1 else ""
    d = [f"s_add_u32 m0, s{S_M0R}, s{S_RN}\ns_add_u32 s{ST+1}, s{S_KVB}, s{S_BO}\nbuffer_load_dwordx4 v{R.DM}, {W}, s{ST+1} offen {sc}lds"]
    for j in range(1, 4):
        d.append(f"buffer_load_dwordx4 v{R.DM}, {W}, s{ST+1} offen offset:{j*1024} {sc}lds")
    d[-1] += (f"\ns_add_u32 s{S_BO}, s{S_BO}, 32768\ns_and_b32 s{S_BO}, s{S_BO}, {8*32768-1}\n"
              f"s_add_u32 s{S_RN}, s{S_RN}, 32768\ns_cmp_eq_u32 s{S_RN}, 98304\ns_cselect_b32 s{S_RN}, 0, s{S_RN}")
    return d

def flag_store(a, off_sgpr, tag):
    a(f"s_cmp_lg_u32 s{S_WV}, 0")
    a(f"s_cbranch_scc1 L_fs_{tag}")
    a(f"v_mov_b32 v{R.T+15}, s{S_NONCE}")
    a(f"buffer_store_dword v{R.T+15}, v{V_ONE}, {SR(S_WS)}, s{off_sgpr} offen sc1")
    a.label(f"L_fs_{tag}")

def block_body(a, kind, hooks=None, fills=None, barvm=0):
    hooks = hooks or {}; fills = fills or {}
    drain = kind != 'loop'
    for i in range(4):
        c = i % 2
        phaseA(a, c)
        pre = ["s_waitcnt lgkmcnt(0)"]
        if i == 0: reads = rdK(c^1, R.A0, 2) + rdV(c^1, R.A0, 1)
        elif i == 1: reads = rdK(c^1, R.A0, 3) + rdV(c^1, R.A0, 2)
        elif i == 2: reads = rdV(c^1, R.A0, 3) + ([] if drain else rdK(c^1, R.A1, 0))
        else: reads = [] if drain else rdK(c^1, R.A1, 1) + rdV(c^1, R.A1, 0)
        if i == 2 and kind != 'first':
            a(f"s_waitcnt vmcnt({barvm}) lgkmcnt(0)" if kind == 'loop' else "s_waitcnt lgkmcnt(0)")
            if not (NO_BAR and kind == 'loop'): a("s_barrier")
            pre = []
            if 'bar' in hooks: hooks['bar'](a)
        phaseB(a, c, reads, pre=pre, with_s=not (drain and i == 3), fill=fills.get(i, ()))
        if i in hooks: hooks[i](a)

def next_block(a):
    a(f"v_mov_b32 v{R.A0}, v{R.A1}")
    a(f"s_add_u32 s{S_RING}, s{S_RING}, 32768")
    a(f"s_cmp_eq_u32 s{S_RING}, 98304")
    a(f"s_cselect_b32 s{S_RING}, 0, s{S_RING}")
    a(f"v_add_u32 v{R.A1}, s{S_RING}, v{R.LB16}")

def tail(a):
    a("s_nop 1")
    a(sm32(R.OB, R.UV[1], R.SB[1])); a(sm16(R.LB, R.SB[1]))
    a(sm32(R.OB, R.UV[1]+4, R.SB[1]+8)); a(sm16(R.LB, R.SB[1]+8))

def start_pipeline(a, first):
    T = R.T
    if first:
        for x in rdK(0, V_L16, 0): a(x)
    for x in rdK(1, R.A0, 0): a(x)
    for r in range(16): a(f"v_mov_b32 v{R.SB[1]+r}, 0")
    for r in range(8): a(f"v_mov_b32 v{R.UV[1]+r}, 0")
    if first:
        for r in range(32): a(f"v_mov_b32 v{R.OA+r}, 0")
        for r in range(8): a(f"v_mov_b32 v{R.LA+r}, 0")
        a("s_waitcnt lgkmcnt(2)")
        a(m32(R.SA[1], R.UK[0], R.QA, None)); a(m32(R.SB[0], R.UK[0], R.QB, None))
        a(m32(R.SA[1], R.UK[0]+4, R.QA+4, R.SA[1])); a(m32(R.SB[0], R.UK[0]+4, R.QB+4, R.SB[0]))
        a("s_nop 7"); a("s_nop 3")
        max_chain(a, T, [R.SA[1]+r for r in range(16)])
        max_chain(a, T+2, [R.SB[0]+r for r in range(16)])
        cross_half(a, "v_max_f32", T, T+1)
        cross_half(a, "v_max_f32", T+2, T+3)
        for r in range(16):
            a(f"v_sub_f32 v{R.NMA+r}, 0, v{T}"); a(f"v_sub_f32 v{R.NMB+r}, 0, v{T+2}")
    a("s_waitcnt lgkmcnt(0)")
    for x in rdK(0, R.A0, 1) + rdV(0, R.A0, 0): a(x)
    a(m32(R.SA[0], R.UK[1], R.QA, R.NMA)); a(m32(R.SA[0], R.UK[1]+4, R.QA+4, R.SA[0]))
    a("s_nop 7"); a("s_nop 3")

class B:
    Q = 160; KS = 168; VS = 176; KP = R.KP; VP = R.VP
    SS = 80; SP = 96; O = 112; L = 144; P = 148
def b_attention(a, npf):
    T = R.T; L = V_LANE
    a(f"s_lshl_b32 s{ST}, s{S_TG}, 1")
    a(f"s_add_u32 s{ST}, s{ST}, s{S_BR}")
    a(f"s_mul_i32 s{ST+1}, s{ST}, 6144")
    a(f"s_add_u32 s{ST+1}, s{ST+1}, {L_STASH}")
    a(f"v_add_u32 v{T}, s{ST+1}, v{V_L16}")
    for ks in range(2): a(f"ds_read_b128 {vr(B.Q+4*ks,4)}, v{T} offset:{ks*1024}")
    for ks in range(2): a(f"ds_read_b128 {vr(B.KS+4*ks,4)}, v{T} offset:{2048+ks*1024}")
    for s in range(2): a(f"ds_read_b128 {vr(B.VS+4*s,4)}, v{T} offset:{4096+s*1024}")
    a(f"s_cmp_eq_u32 s{S_HALO}, 1")
    a("s_cbranch_scc1 L_b_halo")
    a(f"s_and_b32 s{ST+2}, s{ST}, 3")
    a(f"s_cmp_eq_u32 s{ST+2}, 0")
    a(f"s_cselect_b32 s{ST+2}, 0, 6144")
    a(f"s_sub_u32 s{ST+1}, s{ST+1}, s{ST+2}")
    a(f"v_add_u32 v{T+1}, s{ST+1}, v{V_L16}")
    for ks in range(2): a(f"ds_read_b128 {vr(B.KP+4*ks,4)}, v{T+1} offset:{2048+ks*1024}")
    a(f"ds_read_b128 {vr(B.VP,4)}, v{T+1} offset:5120")
    a("s_branch L_b_ops")
    a.label("L_b_halo")
    a(f"s_waitcnt vmcnt({4 if D2_LATE else 8})")
    a.label("L_b_ops")
    if D2_LATE:
        for x in ring_dma(): a(x)
    a(f"v_and_b32 v{T}, 31, v{L}")
    a(f"v_lshrrev_b32 v{T+1}, 5, v{L}")
    a(f"v_lshlrev_b32 v{T+1}, 3, v{T+1}")
    a(f"v_sub_u32 v{T}, v{T}, v{T+1}")
    a(f"v_mov_b32 v{T+1}, 0xff800000")
    a(f"s_lshl_b32 s{ST+2}, s{S_NOPREV}, 10")
    a(f"v_add_u32 v{T+2}, s{ST+2}, v{T}")
    S0 = ST + 2
    for g0 in range(0, 16, 4):
        for r in range(g0, g0+4):
            c = 16*(r//8) + r % 8
            a(f"v_subrev_u32 v{B.SS+r}, {c}, v{T}")
        for k, r in enumerate(range(g0, g0+4)):
            a(f"v_cmp_le_u32_e64 s[{S0+2*k}:{S0+2*k+1}], 8, v{B.SS+r}")
        a("s_nop 0")
        for k, r in enumerate(range(g0, g0+4)):
            a(f"v_cndmask_b32_e64 v{B.SS+r}, 0, v{T+1}, s[{S0+2*k}:{S0+2*k+1}]")
    for g0 in (8, 12):
        for k, r in enumerate(range(g0, g0+4)):
            a(f"v_cmp_gt_i32_e64 s[{S0+2*k}:{S0+2*k+1}], v{T+2}, {r-17}")
        a("s_nop 0")
        for k, r in enumerate(range(g0, g0+4)):
            a(f"v_cndmask_b32_e64 v{B.SP+r}, 0, v{T+1}, s[{S0+2*k}:{S0+2*k+1}]")
    for r in range(8): a(f"v_mov_b32 v{B.SP+r}, 0")
    for r in range(16): a(f"v_mov_b32 v{B.O+r}, 0")
    for r in range(4): a(f"v_mov_b32 v{B.L+r}, 0")
    a("s_waitcnt lgkmcnt(0)")
    a(m32(B.SS, B.KS, B.Q, B.SS))
    a(m32(B.SP, B.KP, B.Q, B.SP))
    a(m32(B.SS, B.KS+4, B.Q+4, B.SS))
    a(m32(B.SP, B.KP+4, B.Q+4, B.SP))
    a("s_nop 7"); a("s_nop 3")
    regs = [B.SS+r for r in range(16)] + [B.SP+r for r in range(8, 16)]
    max_chain(a, T, regs)
    cross_half(a, "v_max_f32", T, T+1)
    for r in regs: a(f"v_sub_f32 v{r}, v{r}, v{T}")
    for r in regs: a(f"v_exp_f32 v{r}, v{r}")
    a("s_nop 1")
    a(sm32(B.O, B.VS, B.SS)); a(sm16(B.L, B.SS))
    a(sm32(B.O, B.VS+4, B.SS+8)); a(sm16(B.L, B.SS+8))
    a(sm32(B.O, B.VP, B.SP+8)); a(sm16(B.L, B.SP+8))
    a("s_nop 7")
    a(f"v_rcp_f32 v{T+2}, v{B.L}")
    a("s_nop 3")
    finish_store(a, B.O, T+2, B.P, S_OBD)

def finish_store(a, O, scale, P, soff):
    for r in range(16): a(f"v_mul_f32 v{O+r}, v{scale}, v{O+r}")
    for m in range(8): a(f"v_cvt_pk_bf16_f32 v{P+m}, v{O+2*m}, v{O+2*m+1}")
    for ks in range(2):
        a(f"buffer_store_dwordx4 {vr(P+4*ks,4)}, v{V_L16}, {SR(S_WS)}, s{soff} offen offset:{ks*1024} sc1")

def gen_fallback(a):
    T = R.T; W = SR(S_WS)
    M, L, AL, TM, TT = T+4, T+5, T+6, T+7, T+8
    S = R.SA[0]
    for r in range(16): a(f"v_mov_b32 v{R.OA+r}, 0")
    a(f"v_mov_b32 v{M}, 0xff800000")
    a(f"v_mov_b32 v{L}, 0")
    a(f"s_mov_b32 s{ST}, s{S_KVB}")
    a(f"s_mov_b32 s{ST+1}, 64")
    FK, FV, FQ_ = R.NMA, R.NMA + 8, R.KP
    a.label("L_fb")
    for ks in range(2): a(f"buffer_load_dwordx4 {vr(FK+4*ks,4)}, v{V_L16}, {W}, s{ST} offen offset:{ks*1024} sc1")
    for s in range(2): a(f"buffer_load_dwordx4 {vr(FV+4*s,4)}, v{V_L16}, {W}, s{ST} offen offset:{2048+s*1024} sc1")
    a("s_waitcnt vmcnt(0)")
    a(m32(S, FK, FQ_, None)); a(m32(S, FK+4, FQ_+4, S))
    a("s_nop 7"); a("s_nop 3")
    max_chain(a, TM, [S+r for r in range(16)])
    cross_half(a, "v_max_f32", TM, TT)
    a(f"v_max_f32 v{TM}, v{TM}, v{M}")
    a(f"v_sub_f32 v{AL}, v{M}, v{TM}")
    a(f"v_exp_f32 v{AL}, v{AL}")
    a(f"v_mov_b32 v{M}, v{TM}")
    for r in range(16): a(f"v_sub_f32 v{S+r}, v{S+r}, v{M}")
    for r in range(16): a(f"v_exp_f32 v{S+r}, v{S+r}")
    a(f"v_mul_f32 v{L}, v{L}, v{AL}")
    for r in range(16):
        a(f"v_and_b32 v{TT}, 0xffff0000, v{S+r}")
        a(f"v_add_f32 v{L}, v{L}, v{TT}")
    for r in range(16): a(f"v_mul_f32 v{R.OA+r}, v{R.OA+r}, v{AL}")
    a("s_nop 1")
    a(sm32(R.OA, FV, S)); a(sm32(R.OA, FV+4, S+8))
    a(f"s_add_u32 s{ST}, s{ST}, 4096")
    a(f"s_sub_u32 s{ST+1}, s{ST+1}, 1")
    a(f"s_cmp_lg_u32 s{ST+1}, 0")
    a("s_nop 7"); a("s_nop 7")
    a("s_cbranch_scc1 L_fb")
    cross_half(a, "v_add_f32", L, TT)
    a(f"v_mov_b32 v{R.LA}, v{L}")

def gen_attention(a, late_hooks=None, pre_combine=None):
    T = R.T; W = SR(S_WS)
    late_hooks = late_hooks or {}
    a(f"s_lshl_b32 s{ST}, s{S_TG}, 1")
    a(f"s_add_u32 s{ST}, s{ST}, s{S_BR}")
    a(f"s_and_b32 s{ST+1}, s{ST}, 3")
    a(f"s_cmp_eq_u32 s{ST+1}, 0")
    a(f"s_cselect_b32 s{ST+1}, 1, 0")
    a(f"s_cmp_eq_u32 s{S_TB}, 0")
    a(f"s_cselect_b32 s{S_NOPREV}, s{ST+1}, 0")
    a(f"s_cselect_b32 s{S_HALO}, 0, s{ST+1}")
    start_pipeline(a, True)
    npf = 0
    stamp(a, 'pipe')
    def h0(a):
        a(f"s_lshl_b32 s{ST+2}, s{S_H}, 11")
        a(f"s_add_u32 s{ST+2}, s{ST+2}, 0x{WS_F1:x}")
        a(f"s_lshl_b32 s{ST+3}, s{S_TB}, 8")
        a(f"s_add_u32 s{ST+3}, s{ST+3}, s{ST+2}")
        if not F1_EARLY:
            stamp(a, 'h0a')
            a("s_waitcnt vmcnt(0)")
            a("s_barrier")
            flag_store(a, ST+3, 'f1')
        stamp(a, 'h0b')
        if F1_AT == 1: hp(a)
    def hp(a):
        a(f"buffer_load_dword v{R.PL}, v{R.PV_}, {W}, s{ST+2} offen sc1")
    def h1(a):
        stamp(a, 'h1a')
        spin_poll(a, R.PL, R.PV_, S_WS, ST+2, 'f1', first=0)
        stamp(a, 'h1b')
        a(f"s_cmp_eq_u32 s{S_HALO}, 0")
        a("s_cbranch_scc1 L_nohalo_ld")
        a(f"s_lshl_b32 s{ST+3}, s{S_H}, 3")
        a(f"s_add_u32 s{ST+3}, s{ST+3}, s{S_TB}")
        a(f"s_sub_u32 s{ST+3}, s{ST+3}, 1")
        a(f"s_lshl_b32 s{ST+3}, s{ST+3}, 1")
        a(f"s_lshr_b32 s{ST+4}, s{S_TG}, 1")
        a(f"s_add_u32 s{ST+3}, s{ST+3}, s{ST+4}")
        a(f"s_lshl_b32 s{ST+3}, s{ST+3}, 12")
        a(f"s_add_u32 s{ST+3}, s{ST+3}, 0x{WS_HALO:x}")
        for ks in range(2): a(f"buffer_load_dwordx4 {vr(R.KP+4*ks,4)}, v{V_L16}, {W}, s{ST+3} offen offset:{ks*1024} sc1")
        a(f"buffer_load_dwordx4 {vr(R.VP,4)}, v{V_L16}, {W}, s{ST+3} offen offset:2048 sc1")
        a.label("L_nohalo_ld")
        for x in ring_dma() + ([] if D2_LATE else ring_dma()): a(x)
    block_body(a, 'first', {0: h0, F1_AT: h1} if F1_AT == 1 else {0: h0, F1_AT - 1: hp, F1_AT: h1})
    tail(a)
    stamp(a, 'blk0')
    b_attention(a, npf)
    stamp(a, 'battn')
    for r in range(8): a(f"v_mov_b32 v{R.KP+r}, v{R.QA+r}")
    a(f"v_mov_b32 v{R.A0}, v{R.A1}")
    a(f"v_add_u32 v{R.A1}, 65536, v{R.LB16}")
    a(f"s_mov_b32 s{S_RING}, 65536")
    a(f"s_waitcnt vmcnt({6+npf})")
    a("s_barrier")
    stamp(a, 'restart')
    start_pipeline(a, False)
    late = late_hooks
    ring = (lambda: []) if NO_RING else ring_dma
    block_body(a, 'loop', {'bar': late.get('f2')}, {0: late['wo'](0)[:2], 1: late['wo'](0)[2:], 2: ring(), 3: late['wo'](1)}, barvm=len(late['wo'](0)))
    next_block(a)
    a(f"s_mov_b32 s{S_N}, 4")
    a.label("L_at_loop")
    stamp(a, 'it')
    block_body(a, 'loop', None, {2: ring()})
    next_block(a)
    a(f"s_sub_u32 s{S_N}, s{S_N}, 1")
    a(f"s_cmp_lg_u32 s{S_N}, 0")
    a("s_cbranch_scc1 L_at_loop")
    pf = late['pf']() if 'pf' in late else []
    block_body(a, 'loop', None, {0: pf, 3: late['wo'](2)}, barvm=len(pf))
    next_block(a)
    block_body(a, 'last', {0: late['poll2']} if 'poll2' in late else None)
    tail(a)
    stamp(a, 'loopend')
    if pre_combine: pre_combine(a)
    stamp(a, 'f2ok')
    a(f"v_add_u32 v{T}, s{S_M0R}, v{V_L16}")
    a(f"s_xor_b32 s{ST}, s{S_M0R}, 16384")
    a(f"v_add_u32 v{T+1}, s{ST}, v{V_L16}")
    a("s_nop 7"); a("s_nop 3")
    for q in range(4): a(f"ds_write_b128 v{T}, {vr(R.OB+4*q,4)} offset:{q*1024}")
    a(f"ds_write_b128 v{T}, {vr(R.LB,4)} offset:32768")
    a("s_waitcnt lgkmcnt(0)")
    a("s_barrier")
    for q in range(4): a(f"ds_read_b128 {vr(R.SA[0]+4*q,4)}, v{T+1} offset:{q*1024}")
    a(f"ds_read_b128 {vr(R.NMB,4)}, v{T+1} offset:32768")
    a("s_waitcnt lgkmcnt(0)")
    for r in range(16): a(f"v_add_f32 v{R.OA+r}, v{R.OA+r}, v{R.SA[0]+r}")
    a(f"v_add_f32 v{R.LA}, v{R.LA}, v{R.NMB}")
    a(f"v_mov_b32 v{T+2}, 0")
    for r in range(16): a(f"v_fma_f32 v{T+2}, v{R.OA+r}, 0, v{T+2}")
    a(f"v_add_f32 v{T+2}, v{T+2}, v{R.LA}")
    a(f"s_mov_b32 s{ST}, 0x{f2u(2.0**40 if not FORCE_FALLBACK else -1.0):x}")
    a(f"v_cmp_nlt_f32 vcc, v{T+2}, s{ST}")
    a("s_nop 4")
    a("s_cbranch_vccz L_at_fin")
    gen_fallback(a)
    a.label("L_at_fin")
    stamp(a, 'comb')
    a(f"v_rcp_f32 v{T+3}, v{R.LA}")
    a("s_nop 0")
    finish_store(a, R.OA, T+3, R.NMA, S_OAD)

S2_T, S2_NT, S2_OBB, S2_OBA, S2_WB, S2_M0, S2_F2P, S2_F3P, S2_F2F, S2_F3F, S2_GOF, S2_OUT, S2_ROT = 32, 33, 34, 35, 38, 39, 40, 41, 44, 45, 48, 49, 50
ROTATE = True
def rot_off(s, shift, base, dst):
    return (f"s_add_u32 s{dst}, s{S2_ROT}, {s%4}\ns_and_b32 s{dst}, s{dst}, 3\ns_lshl_b32 s{dst}, s{dst}, {shift}\n"
            f"s_add_u32 s{dst}, s{dst}, s{base}")
S_WOB, S_WOA, S_OUT = S_A, S_B, S_C
class H:
    DV = 224
    RA = 228; OV = 229; PFV = 230; GT = 231; PD = 232; FP = 233; FQ = 234
    ACCB = 0; ACCA = 32; WF = 192
REG = [98304, 131072, 65536, 32768, 0, 98304, 131072, 65536]
def ofs(s): return 64 + 32*((s + 1) % 4)
F3_AT = 1
POLL_EARLY = True

def g2_setup_v(a, T):
    L = V_LANE
    a(f"s_and_b32 s{ST}, s2, 7")
    a(f"s_lshr_b32 s{ST+1}, s2, 3")
    a(f"s_lshr_b32 s{ST+2}, s{ST}, 1")
    a(f"s_lshl_b32 s{ST+2}, s{ST+2}, 2")
    a(f"s_and_b32 s{ST+3}, s{ST+1}, 3")
    a(f"s_add_u32 s{ST+2}, s{ST+2}, s{ST+3}")
    a(f"s_and_b32 s{ST+3}, s{ST}, 1")
    a(f"s_lshl_b32 s{ST+3}, s{ST+3}, 3")
    a(f"s_lshr_b32 s{ST+4}, s{ST+1}, 2")
    a(f"s_add_u32 s{S2_NT}, s{ST+3}, s{ST+4}")
    a(f"s_lshl_b32 s{S2_T}, s{ST+2}, 2")
    a(f"s_add_u32 s{S2_T}, s{S2_T}, s{S_TG}")
    a(f"s_lshl_b32 s{ST+3}, s{S2_T}, 6")
    a(f"s_lshl_b32 s{ST+4}, s{S_BR}, 4")
    a(f"s_add_u32 s{ST+3}, s{ST+3}, s{ST+4}")
    a(f"s_lshl_b32 s{ST+3}, s{ST+3}, 11")
    a(f"s_add_u32 s{S2_OBA}, s{ST+3}, 0x{WS_O:x}")
    a(f"s_add_u32 s{S2_OBB}, s{S2_OBA}, {32*2048}")
    a(f"s_lshl_b32 s{ST+3}, s{S_BR}, 9")
    a(f"s_lshl_b32 s{ST+4}, s{S_TG}, 5")
    a(f"s_add_u32 s{ST+3}, s{ST+3}, s{ST+4}")
    a(f"s_lshl_b32 s{S2_WB}, s{ST+3}, 11")
    a(f"s_lshl_b32 s{ST+3}, s{S_BR}, 14")
    a(f"s_lshl_b32 s{ST+4}, s{S_TG}, 11")
    a(f"s_add_u32 s{S2_M0}, s{ST+3}, s{ST+4}")
    a(f"s_lshl_b32 s{ST+3}, s{S2_T}, 7")
    a(f"s_add_u32 s{S2_GOF}, s{ST+3}, 0x{WS_G:x}")
    a(f"s_lshr_b32 s{ST+3}, s{ST+2}, 1")
    a(f"s_lshl_b32 s{ST+3}, s{ST+3}, 13")
    a(f"s_add_u32 s{S2_F2P}, s{ST+3}, 0x{WS_F2:x}")
    a(f"s_add_u32 s{S2_F3P}, s{ST+3}, 0x{WS_F3:x}")
    a(f"s_lshl_b32 s{ST+3}, s{S_TB}, 5")
    a(f"s_add_u32 s{ST+3}, s{ST+3}, s{S_H}")
    a(f"s_lshl_b32 s{ST+3}, s{ST+3}, 8")
    a(f"s_add_u32 s{S2_F2F}, s{ST+3}, 0x{WS_F2:x}")
    a(f"s_add_u32 s{S2_F3F}, s{ST+3}, 0x{WS_F3:x}")
    a(f"s_lshr_b32 s{ST+3}, s{ST+2}, 1")
    a(f"s_lshl_b32 s{ST+3}, s{ST+3}, 8")
    a(f"s_and_b32 s{ST+4}, s{ST+2}, 1")
    a(f"s_add_u32 s{ST+3}, s{ST+3}, s{ST+4}")
    a(f"s_lshl_b32 s{ST+4}, s{S_TG}, 6")
    a(f"s_add_u32 s{ST+3}, s{ST+3}, s{ST+4}")
    a(f"s_lshl_b32 s{ST+3}, s{ST+3}, 11")
    a(f"s_lshl_b32 s{ST+4}, s{S2_NT}, 7")
    a(f"s_add_u32 s{ST+3}, s{ST+3}, s{ST+4}")
    a(f"s_lshl_b32 s{ST+4}, s{S_BR}, 6")
    a(f"s_add_u32 s{S2_OUT}, s{ST+3}, s{ST+4}")
    a(f"v_lshrrev_b32 v{T}, 2, v{L}")
    a(f"v_lshlrev_b32 v{T}, 11, v{T}")
    a(f"v_and_b32 v{T+1}, 3, v{L}")
    a(f"v_lshlrev_b32 v{T+1}, 4, v{T+1}")
    a(f"s_lshl_b32 s{ST+3}, s{S2_NT}, 7")
    a(f"v_add3_u32 v{H.DV}, v{T}, v{T+1}, s{ST+3}")
    a(f"v_add_u32 v{H.DV+1}, 32768, v{H.DV}")
    a(f"v_add_u32 v{H.DV+2}, 64, v{H.DV}")
    a(f"v_add_u32 v{H.DV+3}, {32768+64}, v{H.DV}")
    a(f"v_lshrrev_b32 v{T}, 5, v{L}")
    a(f"v_lshlrev_b32 v{T}, 8, v{T}")
    a(f"v_bfe_u32 v{T+1}, v{L}, 2, 2")
    a(f"v_lshlrev_b32 v{T+1}, 6, v{T+1}")
    a(f"v_bfe_u32 v{T+2}, v{L}, 4, 1")
    a(f"v_lshlrev_b32 v{T+2}, 5, v{T+2}")
    a(f"v_add3_u32 v{T}, v{T}, v{T+1}, v{T+2}")
    a(f"v_and_b32 v{T+1}, 3, v{L}")
    a(f"v_lshlrev_b32 v{T+1}, 3, v{T+1}")
    a(f"s_mul_i32 s{ST+3}, s{S_BR}, {16384+8192}")
    a(f"v_add3_u32 v{H.RA}, v{T}, v{T+1}, s{ST+3}")
    a(f"v_and_b32 v{H.OV}, 31, v{L}")
    a(f"v_lshlrev_b32 v{H.FP}, 2, v{H.OV}")
    a(f"v_lshlrev_b32 v{H.FQ}, 8, v{H.OV}")
    a(f"s_lshr_b32 s{S2_ROT}, s{ST+1}, 2")
    a(f"s_and_b32 s{S2_ROT}, s{S2_ROT}, {3 if ROTATE else 0}")
    a(f"v_lshlrev_b32 v{H.OV}, 12, v{H.OV}")
    a(f"v_lshrrev_b32 v{T}, 5, v{L}")
    a(f"v_lshlrev_b32 v{T}, 4, v{T}")
    a(f"v_add_u32 v{H.OV}, v{H.OV}, v{T}")
    a(f"s_and_b32 s{ST+3}, s{ST+1}, 15")
    a(f"s_lshl_b32 s{ST+3}, s{ST+3}, 6")
    a(f"s_lshl_b32 s{ST+4}, s{S_WV}, 3")
    a(f"s_add_u32 s{ST+3}, s{ST+3}, s{ST+4}")
    a(f"v_lshrrev_b32 v{T}, 3, v{L}")
    a(f"v_add_u32 v{T}, s{ST+3}, v{T}")
    a(f"v_lshlrev_b32 v{T}, 11, v{T}")
    a(f"v_and_b32 v{T+1}, 7, v{L}")
    a(f"v_lshlrev_b32 v{T+1}, 7, v{T+1}")
    a(f"s_and_b32 s{ST+3}, s{ST}, 1")
    a(f"s_lshl_b32 s{ST+3}, s{ST+3}, 10")
    a(f"v_add3_u32 v{H.PFV}, v{T}, v{T+1}, s{ST+3}")

def g2_srds(a):
    srd(a, S_WOB, P_WOB, 1024*2048)
    srd(a, S_WOA, P_WOA, 1024*2048)
    srd(a, S_OUT, P_OUT, 2048*2048)

def wo_dma(s):
    sr_ = S_WOB if s < 4 else S_WOA
    out = []
    for b in range(2):
        for hf in range(2):
            pre = rot_off(s, 18, S2_WB, ST+1) + "\n" if (b, hf) == (0, 0) else ""
            out.append(pre + f"s_add_u32 m0, s{S2_M0}, {REG[s] + b*8192 + hf*1024}\ns_nop 0\n"
                       f"buffer_load_dwordx4 v{H.DV+2*b+hf}, {SR(sr_)}, s{ST+1} offen lds")
    return out

def wo_prefetch():
    if NO_PF: return []
    return [f"s_lshr_b32 s{ST+4}, s2, 7\n"
            f"s_cmp_eq_u32 s{ST+4}, 0\n"
            f"s_cselect_b32 s{ST+4}, s{S_WOB}, s{S_WOA}\n"
            f"s_cselect_b32 s{ST+5}, s{S_WOB+1}, s{S_WOA+1}\n"
            f"s_mov_b32 s{ST+6}, s{S_WOB+2}\n"
            f"s_mov_b32 s{ST+7}, s{S_WOB+3}\n"
            f"buffer_load_dword v{H.PD}, v{H.PFV}, {SR(ST+4)}, 0 offen"]

G2_PRE = [('o', 1), ('o', 2), ('w', 3)]
G2_SCHED = {0: [('o', 3), ('w', 4)], 1: ['poll', ('w', 5)], 2: ['chk', ('o', 4), ('o', 5)], 3: [('o', 6), ('w', 6)], 4: [('o', 7), ('w', 7)]}
def gen_gemm2(a, q):
    T = R.T; W = SR(S_WS)
    def items(it):
        if it == 'poll': return [('poll', f"buffer_load_dword v{R.PL}, v{H.FQ}, {W}, s{S2_F3P} offen sc1")]
        kind, s = it
        if kind == 'w': return [(it, x) for x in wo_dma(s)]
        base = S2_OBB if s < 4 else S2_OBA
        out = []
        for f in range(8):
            pre = rot_off(s, 13, base, ST+1) + "\n" if f == 0 else (f"s_add_u32 s{ST+1}, s{ST+1}, 4096\n" if f == 4 else "")
            out.append((it, pre + f"buffer_load_dwordx4 {vr(ofs(s) + f*4, 4)}, v{V_L16}, {W}, s{ST+1} offen offset:{(f%4)*1024} sc1"))
        return out
    def emit(l):
        for tag, x in l: a(x); q.issue(tag)
    emit(items(('o', 0)))
    stamp(a, 'g2a')
    a(f"s_waitcnt vmcnt({q.wait('st')})")
    stamp(a, 'stdone')
    a("s_barrier")
    flag_store(a, S2_F3F, 'f3')
    stamp(a, 'gb0')
    for it in G2_PRE: emit(items(it))
    def reads(s, f, buf):
        hh, ks = f // 2, f % 2
        out = []
        for blk in range(2):
            for tt in range(2):
                off = (32*hh + 16*ks + 8*tt)*64
                out.append(f"ds_read_b64_tr_b16 {vr(H.WF + buf*8 + blk*4 + 2*tt, 2)}, v{RAREG[blk]} offset:{off}")
        return out
    RAREG = [T + 0 + 16, T + 1 + 16]
    a(f"v_add_u32 v{RAREG[0]}, {REG[0]}, v{H.RA}")
    a(f"v_xor_b32 v{RAREG[1]}, 8192, v{H.RA}")
    a(f"v_add_u32 v{RAREG[1]}, {REG[0]}, v{RAREG[1]}")
    for x in reads(0, 0, 0): a(x)
    a(f"s_waitcnt vmcnt({q.wait(('o', 0))})")
    for s in range(8):
        acc_ = H.ACCB if s < 4 else H.ACCA
        todo = []
        for it in G2_SCHED.get(s, []):
            if it == 'chk':
                n = q.wait('poll') if 'poll' in q.q else 63
                spin_poll(a, R.PL, H.FQ, S_WS, S2_F3P, 'f3', first=min(n, 63))
                stamp(a, 'f3ok')
            else: todo += items(it)
        for f in range(8):
            buf = f % 2
            if f == 7 and s < 7:
                n = 63
                for tag in (('o', s+1), ('w', s+1)):
                    if tag in q.q: n = min(n, q.wait(tag))
                a(f"s_waitcnt vmcnt({n}) lgkmcnt(0)" if n < 63 else "s_waitcnt lgkmcnt(0)")
                a("s_barrier")
                d = (REG[s+1] - REG[s]) & 0xffffffff
                a(f"v_add_u32 v{RAREG[0]}, 0x{d:x}, v{RAREG[0]}")
                a(f"v_add_u32 v{RAREG[1]}, 0x{d:x}, v{RAREG[1]}")
                nxt = reads(s+1, 0, buf^1)
            else:
                a("s_waitcnt lgkmcnt(0)")
                nxt = reads(s, f+1, buf^1) if f < 7 else []
            of = ofs(s) + f*4
            first = (s % 4 == 0 and f == 0)
            m = [m32(acc_+16*blk, H.WF + buf*8 + blk*4, of, None if first else acc_+16*blk) for blk in range(2)]
            if nxt: a(nxt[0]); a(nxt[1])
            a(m[0])
            if nxt: a(nxt[2]); a(nxt[3])
            a(m[1])
            k = (len(todo) + (7 - f) - 1) // (7 - f) if f < 7 else len(todo)
            emit(todo[:k]); todo = todo[k:]
        stamp(a, f'st{s}')
    stamp(a, 'g2end')
    a(f"s_lshl_b32 s{ST}, s{S_WV}, 12")
    a(f"v_add_u32 v{T}, s{ST}, v{V_L16}")
    a(f"s_xor_b32 s{ST}, s{ST}, 16384")
    a(f"v_add_u32 v{T+1}, s{ST}, v{V_L16}")
    a(f"v_sub_f32 v{T+2}, 1.0, v{H.GT}")
    a("s_nop 7")
    for r in range(32): a(f"v_mul_f32 v{H.ACCB+r}, v{T+2}, v{H.ACCB+r}")
    for r in range(32): a(f"v_fma_f32 v{H.ACCB+r}, v{H.GT}, v{H.ACCA+r}, v{H.ACCB+r}")
    for qq in range(4): a(f"ds_write_b128 v{T}, {vr(H.ACCB+16+4*qq,4)} offset:{qq*1024}")
    a("s_waitcnt lgkmcnt(0)")
    a("s_barrier")
    X = 64
    for qq in range(4): a(f"ds_read_b128 {vr(X+4*qq,4)}, v{T+1} offset:{qq*1024}")
    a("s_waitcnt lgkmcnt(0)")
    for r in range(16): a(f"v_add_f32 v{H.ACCB+r}, v{H.ACCB+r}, v{X+r}")
    P = X + 16
    for m in range(8): a(f"v_cvt_pk_bf16_f32 v{P+m}, v{H.ACCB+2*m}, v{H.ACCB+2*m+1}")
    a("s_nop 1")
    a(f"v_permlane32_swap_b32 v{P}, v{P+2}")
    a(f"v_permlane32_swap_b32 v{P+1}, v{P+3}")
    a(f"v_permlane32_swap_b32 v{P+4}, v{P+6}")
    a(f"v_permlane32_swap_b32 v{P+5}, v{P+7}")
    a("s_nop 1")
    for qq in range(2):
        a(f"buffer_store_dwordx4 {vr(P+4*qq,4)}, v{H.OV}, {SR(S_OUT)}, s{S2_OUT} offen offset:{32*qq}")

def gen_fused(kname, upto=3):
    a = Asm()
    gen_prologue(a, kname)
    gen_gemm1(a)
    gen_transition(a)
    q = VMQ()
    W = SR(S_WS)
    def poll2(a):
        if NO_POLL2: return
        a(f"buffer_load_dword v{R.PL}, v{H.FQ}, {W}, s{S2_F2P} offen sc1")
    def pre_combine(a):
        spin_poll(a, R.PL, H.FQ, S_WS, S2_F2P, 'f2')
        a(f"buffer_load_dword v{H.GT}, v{H.FP}, {W}, s{S2_GOF} offen sc1"); q.issue('g')
    f2 = lambda a: flag_store(a, S2_F2F, 'f2')
    if upto >= 3:
        gen_attention(a, {'f2': f2, 'poll2': poll2, 'pf': wo_prefetch, 'wo': (lambda s: [] if NO_WO else wo_dma(s))}, pre_combine)
        q.issue('st', 2)
        gen_gemm2(a, q)
    else:
        gen_attention(a, {'f2': f2, 'wo': lambda s: []})
    if STAMPS:
        a("s_waitcnt vmcnt(0)")
        stamp_flush(a, R.T + 4)
    a.label("L_end")
    a("s_endpgm")
    return a
```

```python
from asmlib import *
import math, struct
import gen1
from gen1 import f2u, kd, build_file, interleave, QSCALE, NAME

KA_X, KA_WQA, KA_WOA, KA_BX, KA_WQB, KA_WOB, KA_GW, KA_OUT, KA_DBG, KA_WS = [8*i for i in range(10)]
P_X, P_WQA, P_WOA, P_BX, P_WQB, P_WOB, P_GW, P_OUT, P_DBG, P_WS = [32 + 2*i for i in range(10)]
WS_SIZE = 268435456
WS_KV   = 0
WS_O    = 8 << 20
WS_HALO = 16 << 20
WS_G    = 18 << 20
WS_F1   = WS_G + 0x10000
WS_F2   = WS_G + 0x20000
WS_F3   = WS_G + 0x30000
WS_T    = 48 << 20
LDS_SIZE = 163840
SPIN_MAX = 1 << 15

S_A, S_B, S_WS, S_C = 4, 8, 12, 16
S_H, S_TB, S_WV, S_BR, S_TG, S_HH, S_NONCE, S_CNT = 20, 21, 22, 23, 24, 25, 26, 27
S_M0X, S_M0W, S_KX, S_KW = 28, 29, 30, 31
S_XR, S_WR, S_DX, S_DW, S_PX, S_PW, S_XI, S_CNEG = 52, 53, 54, 55, 56, 57, 58, 59
ST = 60
V_LANE, V_L16, V_ONE = 255, 254, 253

STAMPS = False
S_ST = 72
NST = 12
STAMP_SET = ['start','dma0','setup','bar0','g1end','x1','pipe','blk0','restart','loopend','gb0','g2end']
def stamp(a, name):
    if not STAMPS or name not in STAMP_SET: return
    i = STAMP_SET.index(name)
    a("s_memtime s[96:97]"); a("s_memrealtime s[98:99]"); a("s_waitcnt lgkmcnt(0)")
    a(f"s_mov_b32 s{S_ST+2*i}, s96"); a(f"s_mov_b32 s{S_ST+2*i+1}, s98")
def stamp_flush(a, vt):
    if not STAMPS: return
    a(f"s_cmp_lg_u32 s{S_WV}, 0")
    a(f"s_cbranch_scc1 L_st_skip")
    a(f"s_lshl_b32 s96, s2, 7")
    a(f"s_add_u32 s96, s96, 0x{WS_T:x}")
    a(f"v_mov_b32 v{vt+1}, 0")
    for i in range(2*NST):
        a(f"v_mov_b32 v{vt}, s{S_ST+i}")
        a(f"buffer_store_dword v{vt}, v{vt+1}, s[{S_WS}:{S_WS+3}], s96 offen offset:{4*i}")
    a.label("L_st_skip")

def srd(a, s, ptr, size):
    a(f"s_mov_b32 s{s}, s{ptr}"); a(f"s_mov_b32 s{s+1}, s{ptr+1}")
    a(f"s_mov_b32 s{s+2}, 0x{size:x}"); a(f"s_mov_b32 s{s+3}, 0x20000")
def SR(s): return f"s[{s}:{s+3}]"

def m32(D, A, B, C):
    c = vr(C, 16) if C is not None else '0'
    return f"v_mfma_f32_32x32x16_bf16 {vr(D,16)}, {vr(A,4)}, {vr(B,4)}, {c}"

class VMQ:
    def __init__(self): self.q = []
    def issue(self, tag, n=1): self.q += [tag]*n
    def wait(self, tag):
        idx = max(i for i, t in enumerate(self.q) if t == tag)
        n = len(self.q) - 1 - idx
        self.q = self.q[idx+1:]
        return n

LX = 0; LW = 98304
PF_D = 5
PRIO = True
class G:
    ACC = 0; XF = 96; WF = 112
    XA = 136; WA = 144; XD = 145; WD = 149; PX = 152; PW = 153; PD = 154
    GX = 156; GWV = 164
    GO = 172
    T = 174
def acc(f, b): return G.ACC + (f*3+b)*16
def xf(buf, f): return G.XF + (buf*2+f)*4
def wf(buf, b): return G.WF + (buf*3+b)*4

def g1_reads(s, buf):
    X = [f"ds_read_b128 {vr(xf(buf,f),4)}, v{G.XA+f*4+s}" for f in range(2)]
    W = [f"ds_read_b64_tr_b16 {vr(wf(buf,b)+2*tt,2)}, v{G.WA} offset:{s*3072 + b*1024 + tt*256}" for b in range(3) for tt in range(2)]
    return [X[0]] + W + [X[1]]
def g1_mfmas(buf, zero=False):
    m = []
    for f in range(2):
        for b in range(3):
            A, B = (wf(buf,b), xf(buf,f)) if b < 2 else (xf(buf,f), wf(buf,b))
            m.append(m32(acc(f,b), A, B, None if zero else acc(f,b)))
    return m
def dma_w():
    d = [f"s_add_u32 m0, s{S_M0W}, s{S_WR}\ns_nop 0\nbuffer_load_dwordx4 v{G.WD}, {SR(S_B)}, s{S_KW} offen lds"]
    for b in (1, 2): d.append(f"buffer_load_dwordx4 v{G.WD+b}, {SR(S_B)}, s{S_KW} offen offset:{b*1024} lds")
    d[-1] += f"\ns_add_u32 s{S_KW}, s{S_KW}, {64*6144}\ns_xor_b32 s{S_WR}, s{S_WR}, 24576"
    return d
def dma_x():
    d = [f"s_add_u32 m0, s{S_M0X}, s{S_XR}\ns_nop 0\nbuffer_load_dwordx4 v{G.XD}, {SR(S_A)}, s{S_KX} offen lds"]
    for j in (1, 2, 3): d.append(f"buffer_load_dwordx4 v{G.XD+j}, {SR(S_A)}, s{S_KX} offen offset:{j*1024} lds")
    d[-1] += (f"\ns_add_u32 s{S_KX}, s{S_KX}, 128\ns_add_u32 s{S_XR}, s{S_XR}, 32768\n"
              f"s_cmp_eq_u32 s{S_XR}, 98304\ns_cselect_b32 s{S_XR}, 0, s{S_XR}")
    return d
def pf():
    return [f"buffer_load_dword v{G.PD}, v{G.PX}, {SR(S_A)}, s{S_PX} offen",
            f"buffer_load_dword v{G.PD+1}, v{G.PW}, {SR(S_B)}, s{S_PW} offen\n"
            f"s_add_u32 s{S_PX}, s{S_PX}, 128\ns_min_u32 s{S_PX}, s{S_PX}, {15*128}\n"
            f"s_add_u32 s{S_PW}, s{S_PW}, {64*6144}\ns_min_u32 s{S_PW}, s{S_PW}, {15*64*6144}"]
def addr_adv():
    return [f"v_add_u32 v{G.XA+i}, s{S_DX}, v{G.XA+i}" for i in range(8)] + [f"v_add_u32 v{G.WA}, s{S_DW}, v{G.WA}"]
def adv_deltas(a):
    a(f"s_add_u32 s{S_XI}, s{S_XI}, 1")
    a(f"s_cmp_eq_u32 s{S_XI}, 3")
    a(f"s_cselect_b32 s{S_XI}, 0, s{S_XI}")
    a(f"s_cmp_eq_u32 s{S_XI}, 2")
    a(f"s_cselect_b32 s{S_DX}, s{S_CNEG}, s{ST+11}")
    a(f"s_sub_u32 s{S_DW}, 0, s{S_DW}")

G1_SPREAD = True
G1_PLAN = [[('x', 2), ('x', 4)], [('x', 2), ('x', 4)], [('p', 2), ('p', 4)], [('w', 2), ('w', 3), ('w', 4)]]
def g1_substep(a, buf, nxt, extra, pre_wait, zero=False, vm=()):
    m = g1_mfmas(buf, zero)
    nr = 8
    need = [3, 5, 7, 8, 8, 8]
    per = [3, 3, 2, 0, 0, 0] if nxt else [0]*6
    issued = 0; k = 0; waited = 0
    ex = list(extra); vm = list(vm)
    for i in range(6):
        if not pre_wait and need[i] > waited:
            a(f"s_waitcnt lgkmcnt({min(nr - need[i] + issued, 15)})"); waited = need[i]
        a(m[i])
        for _ in range(per[i]):
            if k < len(nxt): a(nxt[k]); k += 1; issued += 1
        for p_, x_ in vm:
            if p_ == i: a(x_)
        if i >= 2:
            take = (len(ex) + (5 - i)) // (6 - i) if i < 5 else len(ex)
            for _ in range(take): a(ex.pop(0))

def g1_step(a, kind, early=(), post=None):
    early = list(early)
    for s in range(4):
        buf = s % 2
        if s < 3:
            ex = []; vm = []
            if s < 2 and early:
                h = (len(early) + (1 - s)) // (2 - s)
                ex = early[:h]; early = early[h:]
            if s == 2 and kind != 'last': ex = addr_adv()
            if G1_SPREAD and kind == 'loop':
                if s == 0: src = {'x': dma_x(), 'p': pf()}
                vm = [(p_, src[k_].pop(0)) for k_, p_ in G1_PLAN[s]]
            g1_substep(a, buf, g1_reads(s+1, buf^1), ex, False, zero=(kind == 'first' and s == 0), vm=vm)
        else:
            nxt = []; ex = []; vm = []
            if kind == 'last':
                a("s_waitcnt lgkmcnt(0)")
                a("s_barrier")
            else:
                n = {'first': 4 + 2*(PF_D-2), 'loop': 6, 'w': 6, 'none': 0}[kind]
                a(f"s_waitcnt vmcnt({n}) lgkmcnt(0)")
                a("s_barrier")
                nxt = g1_reads(0, buf^1)
                if G1_SPREAD:
                    if kind in ('first', 'loop'):
                        dw = dma_w(); vm = [(p_, dw.pop(0)) for k_, p_ in G1_PLAN[3]]
                else:
                    if kind in ('first', 'loop', 'w'): ex += dma_w()
                    if kind in ('first', 'loop'): ex += dma_x() + pf()
                if kind == 'none': ex += (gate_store() if G1_SPREAD else []) + nonce_load()
            g1_substep(a, buf, nxt, ex, True, vm=vm)
    if post: post(a)

def nonce_load():
    return [f"buffer_load_dword v{G.PD}, v{V_ONE}, {SR(S_C)}, 0 offen sc1"]

def gate_math(a):
    T = G.T
    a(f"v_mov_b32 v{T}, 0")
    for i in range(8): a(f"v_dot2_f32_bf16 v{T}, v{G.GX+i}, v{G.GWV+i}, v{T}")
    a("s_nop 2")
    for sh in (1, 2, 4, 8):
        a("s_nop 1")
        a(f"v_add_f32_dpp v{T}, v{T}, v{T} row_shr:{sh} row_mask:0xf bank_mask:0xf bound_ctrl:0")
    a("s_nop 1")
    for k in range(4): a(f"v_readlane_b32 s{ST+k}, v{T}, {16*k+15}")
    a("s_nop 1")
    a(f"v_mov_b32 v{T}, s{ST}")
    for k in range(1, 4): a(f"v_add_f32 v{T}, s{ST+k}, v{T}")
    a(f"v_mul_f32 v{T}, 0x{f2u(-math.log2(math.e)):x}, v{T}")
    a(f"v_exp_f32 v{T}, v{T}")
    a("s_nop 0")
    a(f"v_add_f32 v{T}, 1.0, v{T}")
    a(f"v_rcp_f32 v{T}, v{T}")
    a("s_nop 0")
    if not G1_SPREAD:
        for x in gate_store(): a(x)
def gate_store(): return [f"buffer_store_dword v{G.T}, v{V_ONE}, {SR(S_WS)}, s{ST+8} offen sc1"]

def gen_prologue(a, kname):
    T = G.T
    a.label(kname)
    a("s_cmp_ge_u32 s2, 256")
    a("s_cbranch_scc1 L_end")
    stamp(a, 'start')
    a("s_load_dwordx16 s[32:47], s[0:1], 0")
    a("s_load_dwordx4 s[48:51], s[0:1], 64")
    a(f"s_and_b32 s{ST}, s2, 7")
    a(f"s_lshr_b32 s{ST+1}, s2, 3")
    a(f"s_and_b32 s{S_HH}, s{ST+1}, 3")
    a(f"s_lshl_b32 s{ST}, s{ST}, 2")
    a(f"s_add_u32 s{S_H}, s{ST}, s{S_HH}")
    a(f"s_lshr_b32 s{S_TB}, s{ST+1}, 2")
    a(f"v_lshrrev_b32 v{T}, 6, v0")
    a(f"v_and_b32 v{V_LANE}, 63, v0")
    a(f"v_readfirstlane_b32 s{S_WV}, v{T}")
    a(f"v_lshlrev_b32 v{V_L16}, 4, v{V_LANE}")
    a(f"v_mov_b32 v{T+1}, 0x7fffff00")
    a(f"v_cmp_eq_u32 vcc, 0, v{V_LANE}")
    a(f"s_lshr_b32 s{S_BR}, s{S_WV}, 2")
    a(f"s_and_b32 s{S_TG}, s{S_WV}, 3")
    a(f"v_cndmask_b32_e64 v{V_ONE}, v{T+1}, 0, vcc")
    L = V_LANE
    a(f"v_lshrrev_b32 v{T}, 2, v{L}")
    a(f"s_lshl_b32 s{ST}, s{S_TG}, 4")
    a(f"v_add_u32 v{T}, s{ST}, v{T}")
    a(f"s_movk_i32 s{ST}, 6144")
    a(f"v_mul_lo_u32 v{T}, v{T}, s{ST}")
    a(f"v_and_b32 v{T+1}, 3, v{L}")
    a(f"v_lshlrev_b32 v{T+1}, 4, v{T+1}")
    a(f"s_lshl_b32 s{ST}, s{S_H}, 6")
    a(f"v_add3_u32 v{G.WD}, v{T}, v{T+1}, s{ST}")
    a(f"v_add_u32 v{G.WD+1}, 1024, v{G.WD}")
    a(f"v_add_u32 v{G.WD+2}, 2048, v{G.WD}")
    a(f"s_mul_i32 s{ST}, s{S_BR}, 12288")
    a(f"s_mul_i32 s{ST+1}, s{S_TG}, 3072")
    a(f"s_add_u32 s{S_M0W}, s{ST}, s{ST+1}")
    a(f"s_add_u32 s{S_M0W}, s{S_M0W}, {LW}")
    a(f"v_lshrrev_b32 v{T}, 3, v{L}")
    a(f"s_lshl_b32 s{ST}, s{S_TG}, 5")
    a(f"v_add_u32 v{T}, s{ST}, v{T}")
    a(f"v_lshlrev_b32 v{T}, 1, v{T}")
    a(f"s_lshl_b32 s{ST}, s{S_TB}, 8")
    a(f"s_add_u32 s{ST}, s{ST}, s{S_BR}")
    a(f"v_add_u32 v{T}, s{ST}, v{T}")
    a(f"v_lshlrev_b32 v{T}, 11, v{T}")
    a(f"v_and_b32 v{T+1}, 7, v{L}")
    a(f"v_lshrrev_b32 v{T+2}, 4, v{L}")
    a(f"v_xor_b32 v{T+1}, v{T+1}, v{T+2}")
    a(f"v_xor_b32 v{T+2}, 4, v{T+1}")
    a(f"v_lshlrev_b32 v{T+1}, 4, v{T+1}")
    a(f"v_lshlrev_b32 v{T+2}, 4, v{T+2}")
    for j in range(4):
        src = T+1 if j % 2 == 0 else T+2
        a(f"v_add_u32 v{G.XD+j}, v{T}, v{src}")
        if j: a(f"v_add_u32 v{G.XD+j}, {j*(16*2048 - 1024)}, v{G.XD+j}")
    a(f"s_lshl_b32 s{S_M0X}, s{S_WV}, 12")
    for s_ in (S_KX, S_KW, S_XR, S_WR): a(f"s_mov_b32 s{s_}, 0")
    a("s_waitcnt lgkmcnt(0)")
    srd(a, S_A, P_X, 2048*2048)
    a(f"s_cmp_eq_u32 s{S_BR}, 0")
    a(f"s_cselect_b32 s{S_B}, s{P_WQA}, s{P_WQB}")
    a(f"s_cselect_b32 s{S_B+1}, s{P_WQA+1}, s{P_WQB+1}")
    a(f"s_mov_b32 s{S_B+2}, 0x{1024*6144:x}")
    a(f"s_mov_b32 s{S_B+3}, 0x20000")
    for x in dma_w() + dma_x(): a(x)
    stamp(a, 'dma0')
    if PRIO:
        a(f"s_cmp_ge_u32 s{S_WV}, 4")
        a("s_cbranch_scc0 L_prio")
        a("s_setprio 1")
        a.label("L_prio")
    srd(a, S_WS, P_WS, WS_SIZE)
    srd(a, S_C, P_DBG, 256)
    a(f"s_or_b32 s{ST}, s2, s{S_WV}")
    a(f"s_cmp_lg_u32 s{ST}, 0")
    a("s_cbranch_scc1 L_nononce")
    a(f"s_memrealtime s[{ST}:{ST+1}]")
    a("s_waitcnt lgkmcnt(0)")
    a(f"s_or_b32 s{ST}, s{ST}, 1")
    a(f"v_mov_b32 v{T}, s{ST}")
    a(f"buffer_store_dword v{T}, v{V_ONE}, {SR(S_C)}, 0 offen sc1")
    a.label("L_nononce")
    a(f"s_lshr_b32 s{ST}, s{S_H}, 2")
    a(f"s_lshl_b32 s{ST+1}, s{S_HH}, 3")
    a(f"s_add_u32 s{ST+1}, s{ST+1}, s{S_WV}")
    a(f"s_lshl_b32 s{ST+2}, s{S_TB}, 3")
    a(f"s_add_u32 s{ST+2}, s{ST+2}, s{ST}")
    a(f"s_lshl_b32 s{ST+8}, s{ST+2}, 5")
    a(f"s_add_u32 s{ST+8}, s{ST+8}, s{ST+1}")
    a(f"s_lshl_b32 s{ST+8}, s{ST+8}, 2")
    a(f"s_add_u32 s{ST+8}, s{ST+8}, 0x{WS_G:x}")
    a(f"s_and_b32 s{ST+2}, s{ST}, 3")
    a(f"s_lshl_b32 s{ST+2}, s{ST+2}, 5")
    a(f"s_add_u32 s{ST+2}, s{ST+2}, s{ST+1}")
    a(f"s_lshl_b32 s{ST+2}, s{ST+2}, 1")
    a(f"s_lshr_b32 s{ST+3}, s{ST}, 2")
    a(f"s_add_u32 s{ST+2}, s{ST+2}, s{ST+3}")
    a(f"s_lshl_b32 s{ST+3}, s{S_TB}, 8")
    a(f"s_add_u32 s{ST+2}, s{ST+2}, s{ST+3}")
    a(f"s_lshl_b32 s{ST+2}, s{ST+2}, 11")
    a(f"s_mov_b32 s{ST+4}, s{P_GW}"); a(f"s_mov_b32 s{ST+5}, s{P_GW+1}")
    a(f"s_mov_b32 s{ST+6}, 2048"); a(f"s_mov_b32 s{ST+7}, 0x20000")
    a(f"v_lshlrev_b32 v{G.GO}, 5, v{L}")
    for q in range(2): a(f"buffer_load_dwordx4 {vr(G.GX+4*q,4)}, v{G.GO}, {SR(S_A)}, s{ST+2} offen offset:{16*q}")
    for q in range(2): a(f"buffer_load_dwordx4 {vr(G.GWV+4*q,4)}, v{G.GO}, {SR(ST+4)}, 0 offen offset:{16*q}")
    a(f"s_lshl_b32 s{ST}, s{S_TB}, 8")
    a(f"s_lshl_b32 s{ST+1}, s{S_HH}, 6")
    a(f"s_add_u32 s{ST}, s{ST}, s{ST+1}")
    a(f"s_lshl_b32 s{ST+1}, s{S_WV}, 3")
    a(f"s_add_u32 s{ST}, s{ST}, s{ST+1}")
    a(f"v_add_u32 v{T}, s{ST}, v{L}")
    a(f"v_lshlrev_b32 v{G.PX}, 11, v{T}")
    a(f"v_mov_b32 v{T+1}, 0x7fffff00")
    a(f"v_cmp_gt_u32 vcc, 8, v{L}")
    a(f"s_lshl_b32 s{ST}, s{S_TB}, 3")
    a(f"s_and_b32 s{ST+1}, s{S_HH}, 1")
    a(f"s_lshl_b32 s{ST+1}, s{ST+1}, 2")
    a(f"s_add_u32 s{ST}, s{ST}, s{ST+1}")
    a(f"s_add_u32 s{ST}, s{ST}, s{S_TG}")
    a(f"s_mul_i32 s{ST}, s{ST}, 6144")
    a(f"v_cndmask_b32 v{G.PX}, v{T+1}, v{G.PX}, vcc")
    a(f"s_lshr_b32 s{ST+1}, s{S_H}, 1")
    a(f"s_lshl_b32 s{ST+1}, s{ST+1}, 7")
    a(f"s_add_u32 s{ST}, s{ST}, s{ST+1}")
    a(f"v_lshlrev_b32 v{T}, 11, v{L}")
    a(f"v_add_u32 v{G.PW}, s{ST}, v{T}")
    a(f"v_cmp_gt_u32 vcc, 3, v{L}")
    a(f"s_mov_b32 s{S_PX}, {2*128}")
    a(f"s_mov_b32 s{S_PW}, {2*64*6144}")
    a(f"v_cndmask_b32 v{G.PW}, v{T+1}, v{G.PW}, vcc")
    a(f"v_and_b32 v{T}, 31, v{L}")
    a(f"v_lshrrev_b32 v{T+1}, 5, v{L}")
    a(f"v_lshrrev_b32 v{T+2}, 1, v{T}")
    a(f"v_and_b32 v{T+2}, 7, v{T+2}")
    a(f"v_xor_b32 v{T+1}, v{T+1}, v{T+2}")
    a(f"v_lshlrev_b32 v{T+1}, 4, v{T+1}")
    a(f"v_lshlrev_b32 v{T}, 7, v{T}")
    a(f"v_add_u32 v{T}, v{T}, v{T+1}")
    a(f"s_lshl_b32 s{ST}, s{S_TG}, 13")
    a(f"v_add_u32 v{T}, s{ST}, v{T}")
    a(f"s_lshl_b32 s{ST}, s{S_BR}, 12")
    a(f"s_xor_b32 s{ST+1}, s{ST}, 4096")
    for s in range(4):
        a(f"v_xor_b32 v{T+1}, {32*s}, v{T}")
        a(f"v_add_u32 v{G.XA+s}, s{ST}, v{T+1}")
        a(f"v_add_u32 v{G.XA+4+s}, s{ST+1}, v{T+1}")
    a(f"v_lshrrev_b32 v{T}, 5, v{L}")
    a(f"v_lshlrev_b32 v{T}, 9, v{T}")
    a(f"v_bfe_u32 v{T+1}, v{L}, 2, 2")
    a(f"v_lshlrev_b32 v{T+1}, 6, v{T+1}")
    a(f"v_bfe_u32 v{T+2}, v{L}, 4, 1")
    a(f"v_lshlrev_b32 v{T+2}, 5, v{T+2}")
    a(f"v_add3_u32 v{T}, v{T}, v{T+1}, v{T+2}")
    a(f"v_and_b32 v{T+1}, 3, v{L}")
    a(f"v_lshlrev_b32 v{T+1}, 3, v{T+1}")
    a(f"s_mul_i32 s{ST}, s{S_BR}, 12288")
    a(f"s_add_u32 s{ST}, s{ST}, {LW}")
    a(f"v_add3_u32 v{G.WA}, v{T}, v{T+1}, s{ST}")
    for x in dma_w() + dma_x(): a(x)
    g2_setup_v(a, T)
    a(f"s_mov_b32 s{S_DX}, 32768")
    a(f"s_mov_b32 s{S_DW}, 24576")
    a(f"s_mov_b32 s{S_XI}, 0")
    a(f"s_mov_b32 s{S_CNEG}, 0x{(-65536) & 0xffffffff:x}")
    a(f"s_mov_b32 s{ST+11}, 32768")
    stamp(a, 'setup')
    a("s_waitcnt vmcnt(11)")
    a("s_barrier")
    stamp(a, 'bar0')
    for x in g1_reads(0, 0): a(x)

def gen_gemm1(a):
    early = dma_x()
    for u in range(2, PF_D): early += pf()
    g1_step(a, 'first', early, post=gate_math)
    adv_deltas(a)
    a(f"s_mov_b32 s{S_CNT}, {13 if G1_SPREAD else 12}")
    a.label("L_g1_loop")
    g1_step(a, 'loop')
    adv_deltas(a)
    a(f"s_sub_u32 s{S_CNT}, s{S_CNT}, 1")
    a(f"s_cmp_lg_u32 s{S_CNT}, 0")
    a("s_cbranch_scc1 L_g1_loop")
    if not G1_SPREAD:
        g1_step(a, 'w'); adv_deltas(a)
    g1_step(a, 'none')
    g1_step(a, 'last')
    stamp(a, 'g1end')

L_STASH = 98304
L_QX    = 147456
S_BO, S_KVB, S_RN, S_RING, S_N, S_M0R, S_T0, S_OBD, S_OAD, S_NOPREV, S_HALO, S_QS = 28, 29, 30, 31, 52, 53, 54, 55, 56, 57, 58, 59
class R:
    OA = 0; OB = 16; LA = 32; LB = 36; SEL = 40; IDX = 44; A0 = 45; A1 = 46; DM = 47
    NMA = 48; NMB = 64
    SA = [80, 96]; SB = [112, 144]
    QA = 128; QB = 136
    UK = [160, 176]; UV = [168, 184]
    T = 192
    KP = 208; VP = 216; LB16 = 220; PL = 221; PV_ = 222
    LP = 223
FORCE_FALLBACK = False
uid = [0]
def spin_poll(a, dst, voff, srd_, soff, tag, first=0):
    a(f"s_mov_b32 s{ST}, {SPIN_MAX}")
    a(f"s_waitcnt vmcnt({first})")
    a(f"s_branch L_poll_{tag}_chk")
    a.label(f"L_poll_{tag}")
    a("s_waitcnt vmcnt(0)")
    a.label(f"L_poll_{tag}_chk")
    a(f"v_cmp_ne_u32 vcc, s{S_NONCE}, v{dst}")
    a("s_nop 4")
    a(f"s_cbranch_vccz L_poll_{tag}_ok")
    a(f"s_sub_u32 s{ST}, s{ST}, 1")
    a(f"s_cmp_eq_u32 s{ST}, 0")
    a(f"s_cbranch_scc1 L_poll_{tag}_ok")
    a("s_sleep 2")
    a(f"buffer_load_dword v{dst}, v{voff}, {SR(srd_)}, s{soff} offen sc1")
    a(f"s_branch L_poll_{tag}")
    a.label(f"L_poll_{tag}_ok")

def pack(a, base, dst, scale=None):
    for m in range(8):
        if scale is not None:
            a(f"v_mul_f32 v{base+2*m}, s{scale}, v{base+2*m}")
            a(f"v_mul_f32 v{base+2*m+1}, s{scale}, v{base+2*m+1}")
        a(f"v_cvt_pk_bf16_f32 v{dst+m}, v{base+2*m}, v{base+2*m+1}")

def gen_transition(a):
    T = R.T; L = V_LANE
    W = SR(S_WS)
    a(f"s_mov_b32 s{S_QS}, 0x{f2u(QSCALE):x}")
    a(f"v_and_b32 v{T}, 0x33, v{L}")
    a(f"v_lshrrev_b32 v{T+1}, 1, v{L}")
    a(f"v_and_b32 v{T+1}, 4, v{T+1}")
    a(f"v_or_b32 v{T}, v{T}, v{T+1}")
    a(f"v_lshlrev_b32 v{T+1}, 1, v{L}")
    a(f"v_and_b32 v{T+1}, 8, v{T+1}")
    a(f"v_or_b32 v{T}, v{T}, v{T+1}")
    a(f"v_lshlrev_b32 v{R.LP}, 4, v{T}")
    a(f"s_lshl_b32 s{S_T0}, s{S_TB}, 3")
    a(f"s_lshl_b32 s{ST}, s{S_TG}, 1")
    a(f"s_add_u32 s{ST}, s{ST}, s{S_BR}")
    a(f"s_add_u32 s{S_T0}, s{S_T0}, s{ST}")
    a(f"s_lshl_b32 s{S_KVB}, s{S_H}, 18")
    if WS_KV: a(f"s_add_u32 s{S_KVB}, s{S_KVB}, 0x{WS_KV:x}")
    a(f"s_lshl_b32 s{S_OAD}, s{S_T0}, 6")
    a(f"s_add_u32 s{S_OAD}, s{S_OAD}, s{S_H}")
    a(f"s_lshl_b32 s{S_OAD}, s{S_OAD}, 11")
    a(f"s_add_u32 s{S_OAD}, s{S_OAD}, 0x{WS_O:x}")
    a(f"s_add_u32 s{S_OBD}, s{S_OAD}, {32*2048}")
    a(f"s_cmp_lg_u32 s{S_BR}, 0")
    a("s_cbranch_scc1 L_tr_b")
    a(f"s_lshl_b32 s{ST+1}, s{S_T0}, 12")
    a(f"s_add_u32 s{ST+1}, s{ST+1}, s{S_KVB}")
    a(f"s_lshl_b32 s{ST+2}, s{S_TG}, 13")
    a(f"v_add_u32 v{T}, s{ST+2}, v{R.LP}")
    a(f"v_add_u32 v{T+1}, s{ST+2}, v{V_L16}")
    a(f"s_lshl_b32 s{ST+3}, s{S_TG}, 12")
    a(f"s_add_u32 s{ST+3}, s{ST+3}, {L_QX}")
    a(f"v_add_u32 v{T+2}, s{ST+3}, v{V_L16}")
    a(f"s_add_u32 s{ST+4}, s{ST+1}, 4096")
    a("s_nop 4")
    P = 96
    for f in range(2):
        so = ST+1 if f == 0 else ST+4
        pk = P + f*16; pv = pk + 8
        pack(a, acc(f,1), pk)
        for ks in range(2):
            a(f"buffer_store_dwordx4 {vr(pk+4*ks,4)}, v{R.LP}, {W}, s{so} offen offset:{ks*1024} sc1")
        pack(a, acc(f,2), pv)
        for s in range(2):
            a(f"buffer_store_dwordx4 {vr(pv+4*s,4)}, v{V_L16}, {W}, s{so} offen offset:{2048+s*1024} sc1")
        for ks in range(2): a(f"ds_write_b128 v{T}, {vr(pk+4*ks,4)} offset:{f*4096 + ks*1024}")
        for s in range(2): a(f"ds_write_b128 v{T+1}, {vr(pv+4*s,4)} offset:{f*4096 + 2048 + s*1024}")
    for f in range(2):
        q = R.QA if f == 0 else R.QB
        pack(a, acc(f,0), q, S_QS)
        for ks in range(2): a(f"ds_write_b128 v{T+2}, {vr(q+4*ks,4)} offset:{f*2048 + ks*1024}")
    a("s_branch L_tr_join")
    a.label("L_tr_b")
    a(f"s_mul_i32 s{ST+1}, s{S_TG}, 12288")
    a(f"s_add_u32 s{ST+1}, s{ST+1}, {L_STASH}")
    a(f"v_add_u32 v{T}, s{ST+1}, v{R.LP}")
    a(f"v_add_u32 v{T+1}, s{ST+1}, v{V_L16}")
    a(f"s_lshl_b32 s{ST+2}, s{S_H}, 3")
    a(f"s_add_u32 s{ST+2}, s{ST+2}, s{S_TB}")
    a(f"s_lshl_b32 s{ST+2}, s{ST+2}, 1")
    a(f"s_lshr_b32 s{ST+3}, s{S_TG}, 1")
    a(f"s_add_u32 s{ST+2}, s{ST+2}, s{ST+3}")
    a(f"s_lshl_b32 s{ST+2}, s{ST+2}, 12")
    a(f"s_add_u32 s{ST+2}, s{ST+2}, 0x{WS_HALO:x}")
    a("s_nop 2")
    for f in range(2):
        off = 6144 if f == 0 else 0
        pk = P + f*24; pv = pk + 8; pq = pk + 16
        pack(a, acc(f,1), pk)
        pack(a, acc(f,2), pv)
        if f == 0:
            a(f"s_bitcmp1_b32 s{S_TG}, 0")
            a("s_cbranch_scc0 L_tr_nohalo")
            for ks in range(2):
                a(f"buffer_store_dwordx4 {vr(pk+4*ks,4)}, v{R.LP}, {W}, s{ST+2} offen offset:{ks*1024} sc1")
            a(f"buffer_store_dwordx4 {vr(pv+4,4)}, v{V_L16}, {W}, s{ST+2} offen offset:2048 sc1")
            a.label("L_tr_nohalo")
        for ks in range(2): a(f"ds_write_b128 v{T}, {vr(pk+4*ks,4)} offset:{off + 2048 + ks*1024}")
        for s in range(2): a(f"ds_write_b128 v{T+1}, {vr(pv+4*s,4)} offset:{off + 4096 + s*1024}")
        pack(a, acc(f,0), pq, S_QS)
        for ks in range(2): a(f"ds_write_b128 v{T+1}, {vr(pq+4*ks,4)} offset:{off + ks*1024}")
    a.label("L_tr_join")
    a("s_waitcnt vmcnt(8)")
    a(f"s_cmp_lg_u32 s{S_BR}, 0")
    a("s_cbranch_scc0 L_tr_n0")
    a("s_waitcnt vmcnt(3)")
    a(f"s_bitcmp1_b32 s{S_TG}, 0")
    a("s_cbranch_scc1 L_tr_n0")
    a("s_waitcnt vmcnt(0)")
    a.label("L_tr_n0")
    a(f"v_readfirstlane_b32 s{S_NONCE}, v{G.PD}")
    a(f"s_mov_b32 s{ST}, {SPIN_MAX}")
    a.label("L_nonce_poll")
    a(f"s_cmp_lg_u32 s{S_NONCE}, 0")
    a("s_cbranch_scc1 L_nonce_ok")
    a(f"s_sub_u32 s{ST}, s{ST}, 1")
    a(f"s_cmp_eq_u32 s{ST}, 0")
    a("s_cbranch_scc1 L_nonce_ok")
    a(f"buffer_load_dword v{G.PD}, v{V_ONE}, {SR(S_C)}, 0 offen sc1")
    a("s_waitcnt vmcnt(0)")
    a(f"v_readfirstlane_b32 s{S_NONCE}, v{G.PD}")
    a("s_branch L_nonce_poll")
    a.label("L_nonce_ok")
    g2_srds(a)
    a(f"v_mov_b32 v{R.IDX}, 0xdddddddd")
    a(f"v_bfe_u32 v{T}, v{L}, 2, 1")
    a(f"v_mov_b32 v{T+1}, 0x3f803f80")
    a(f"v_mul_lo_u32 v{R.SEL+2}, v{T}, v{T+1}")
    a(f"v_sub_u32 v{R.SEL}, v{T+1}, v{R.SEL+2}")
    a(f"v_mov_b32 v{R.SEL+3}, v{R.SEL+2}")
    a(f"v_mov_b32 v{R.SEL+1}, v{R.SEL}")
    a(f"s_lshl_b32 s{S_M0R}, s{S_WV}, 12")
    a(f"v_add_u32 v{R.DM}, s{S_M0R}, v{V_L16}")
    a(f"s_lshl_b32 s{ST}, s{S_BR}, 14")
    a(f"v_add_u32 v{R.LB16}, s{ST}, v{V_L16}")
    a(f"v_mov_b32 v{R.A0}, v{R.LB16}")
    a(f"v_add_u32 v{R.A1}, 32768, v{R.LB16}")
    a(f"s_mov_b32 s{S_RING}, 32768")
    a(f"s_add_u32 s{S_BO}, s{S_TB}, 1")
    a(f"s_and_b32 s{S_BO}, s{S_BO}, 7")
    a(f"s_lshl_b32 s{S_BO}, s{S_BO}, 15")
    a(f"s_mov_b32 s{S_RN}, 32768")
    a(f"v_and_b32 v{R.PV_}, 7, v{L}")
    a(f"v_lshlrev_b32 v{R.PV_}, 8, v{R.PV_}")
    stamp(a, 'trw')
    if F1_EARLY and not F1_MID:
        a(f"s_lshl_b32 s{ST+2}, s{S_H}, 11")
        a(f"s_add_u32 s{ST+2}, s{ST+2}, 0x{WS_F1:x}")
        a(f"s_lshl_b32 s{ST+3}, s{S_TB}, 8")
        a(f"s_add_u32 s{ST+3}, s{ST+3}, s{ST+2}")
        a("s_waitcnt vmcnt(0) lgkmcnt(0)")
        a("s_barrier")
        flag_store(a, ST+3, 'f1')
    else:
        a("s_waitcnt lgkmcnt(0)")
        a("s_barrier")
    stamp(a, 'x1')
    a(f"s_cmp_eq_u32 s{S_BR}, 0")
    a("s_cbranch_scc1 L_tr_haveq")
    a(f"s_lshl_b32 s{ST}, s{S_TG}, 12")
    a(f"s_add_u32 s{ST}, s{ST}, {L_QX}")
    a(f"v_add_u32 v{T}, s{ST}, v{V_L16}")
    for ks in range(2): a(f"ds_read_b128 {vr(R.QA+4*ks,4)}, v{T} offset:{2048 + ks*1024}")
    for ks in range(2): a(f"ds_read_b128 {vr(R.QB+4*ks,4)}, v{T} offset:{ks*1024}")
    a.label("L_tr_haveq")

def sm32(D, A, B): return f"v_smfmac_f32_32x32x32_bf16 {vr(D,16)}, {vr(A,4)}, {vr(B,8)}, v{R.IDX}"
def sm16(D, B): return f"v_smfmac_f32_16x16x64_bf16 {vr(D,4)}, {vr(R.SEL,4)}, {vr(B,8)}, v{R.IDX}"
def max_chain(a, dst, regs):
    regs = list(regs)
    a(f"v_max3_f32 v{dst}, v{regs[0]}, v{regs[1]}, v{regs[2]}")
    k = 3
    while k < len(regs):
        if k + 1 < len(regs):
            a(f"v_max3_f32 v{dst}, v{dst}, v{regs[k]}, v{regs[k+1]}"); k += 2
        else:
            a(f"v_max_f32 v{dst}, v{dst}, v{regs[k]}"); k += 1
def cross_half(a, op, dst, tmp):
    a(f"v_mov_b32 v{tmp}, v{dst}")
    a("s_nop 1")
    a(f"v_permlane32_swap_b32 v{dst}, v{tmp}")
    a("s_nop 1")
    a(f"{op} v{dst}, v{dst}, v{tmp}")

POS = [0, 3, 6, 8, 11, 14]
MORD = [0, 1, 2, 3, 4, 5]
RING_SPLIT = True
def phase(a, exps, mats, extra=None):
    extra = extra or {}
    if len(mats) == 6: mats = [mats[k] for k in MORD]
    k = 0
    for i, e in enumerate(exps):
        for x in extra.get(i, []): a(x)
        while k < len(mats) and POS[k + (6 - len(mats))] <= i:
            a(mats[k]); k += 1
        a(e)
    while k < len(mats):
        a(mats[k]); k += 1
def phaseA(a, c, fill=()):
    S = R.SA[c]
    mats = [m32(R.SB[c], R.UK[c^1], R.QB, R.NMB), m32(R.SB[c], R.UK[c^1]+4, R.QB+4, R.SB[c]),
            sm32(R.OB, R.UV[c^1], R.SB[c^1]), sm16(R.LB, R.SB[c^1]),
            sm32(R.OB, R.UV[c^1]+4, R.SB[c^1]+8), sm16(R.LB, R.SB[c^1]+8)]
    extra = {}
    for k, d in enumerate(fill): extra.setdefault(min(FILLA + 4*k, 15), []).append(d)
    phase(a, [f"v_exp_f32 v{S+r}, v{S+r}" for r in range(16)], mats, extra)
FILLA = 5
def phaseB(a, c, reads, pre=(), with_s=True, fill=()):
    S = R.SB[c]
    mats = []
    if with_s:
        mats += [m32(R.SA[c^1], R.UK[c], R.QA, R.NMA), m32(R.SA[c^1], R.UK[c]+4, R.QA+4, R.SA[c^1])]
    mats += [sm32(R.OA, R.UV[c], R.SA[c]), sm16(R.LA, R.SA[c]),
             sm32(R.OA, R.UV[c]+4, R.SA[c]+8), sm16(R.LA, R.SA[c]+8)]
    for x in pre: a(x)
    extra = {}
    for k, rd in enumerate(reads): extra.setdefault(2 + 2*k, []).append(rd)
    for k, d in enumerate(fill): extra.setdefault(min(1 + 2*k, 15), []).append(d)
    phase(a, [f"v_exp_f32 v{S+r}, v{S+r}" for r in range(16)], mats, extra)
def rdK(buf, areg, tile):
    return [f"ds_read_b128 {vr(R.UK[buf]+4*ks,4)}, v{areg} offset:{tile*4096 + ks*1024}" for ks in range(2)]
def rdV(buf, areg, tile):
    return [f"ds_read_b128 {vr(R.UV[buf]+4*s,4)}, v{areg} offset:{tile*4096 + 2048 + s*1024}" for s in range(2)]

RING_SC1 = True
O0_EARLY = True
O0_MODE = 1
O0_PLAN = lambda o, w: ({3: w}, {0: o[0:4], 1: o[4:8]})
NO_PF = False
NO_WO = False
NO_POLL2 = False
F1_AT = 3
F1_EARLY = True
F1_MID = False
D2_LATE = True
NO_RING = False
NO_BAR = False
def ring_dma():
    W = SR(S_WS)
    sc = "sc1 " if RING_SC1 else ""
    d = [f"s_add_u32 m0, s{S_M0R}, s{S_RN}\ns_add_u32 s{ST+1}, s{S_KVB}, s{S_BO}\nbuffer_load_dwordx4 v{R.DM}, {W}, s{ST+1} offen {sc}lds"]
    for j in range(1, 4):
        d.append(f"buffer_load_dwordx4 v{R.DM}, {W}, s{ST+1} offen offset:{j*1024} {sc}lds")
    d[-1] += (f"\ns_add_u32 s{S_BO}, s{S_BO}, 32768\ns_and_b32 s{S_BO}, s{S_BO}, {8*32768-1}\n"
              f"s_add_u32 s{S_RN}, s{S_RN}, 32768\ns_cmp_eq_u32 s{S_RN}, 98304\ns_cselect_b32 s{S_RN}, 0, s{S_RN}")
    return d

def flag_store(a, off_sgpr, tag):
    a(f"s_cmp_lg_u32 s{S_WV}, 0")
    a(f"s_cbranch_scc1 L_fs_{tag}")
    a(f"v_mov_b32 v{R.T+15}, s{S_NONCE}")
    a(f"buffer_store_dword v{R.T+15}, v{V_ONE}, {SR(S_WS)}, s{off_sgpr} offen sc1")
    a.label(f"L_fs_{tag}")

def block_body(a, kind, hooks=None, fills=None, barvm=0):
    hooks = hooks or {}; fills = fills or {}
    drain = kind != 'loop'
    for i in range(4):
        c = i % 2
        phaseA(a, c, fills.get(('A', i), ()))
        pre = ["s_waitcnt lgkmcnt(0)"]
        if i == 0: reads = rdK(c^1, R.A0, 2) + rdV(c^1, R.A0, 1)
        elif i == 1: reads = rdK(c^1, R.A0, 3) + rdV(c^1, R.A0, 2)
        elif i == 2: reads = rdV(c^1, R.A0, 3) + ([] if drain else rdK(c^1, R.A1, 0))
        else: reads = [] if drain else rdK(c^1, R.A1, 1) + rdV(c^1, R.A1, 0)
        if i == 2 and kind != 'first':
            a(f"s_waitcnt vmcnt({barvm}) lgkmcnt(0)" if kind == 'loop' else "s_waitcnt lgkmcnt(0)")
            if not (NO_BAR and kind == 'loop'): a("s_barrier")
            pre = []
            if 'bar' in hooks: hooks['bar'](a)
        phaseB(a, c, reads, pre=pre, with_s=not (drain and i == 3), fill=fills.get(i, ()))
        if i in hooks: hooks[i](a)

def next_block(a):
    a(f"v_mov_b32 v{R.A0}, v{R.A1}")
    a(f"s_add_u32 s{S_RING}, s{S_RING}, 32768")
    a(f"s_cmp_eq_u32 s{S_RING}, 98304")
    a(f"s_cselect_b32 s{S_RING}, 0, s{S_RING}")
    a(f"v_add_u32 v{R.A1}, s{S_RING}, v{R.LB16}")

def tail(a):
    a("s_nop 1")
    a(sm32(R.OB, R.UV[1], R.SB[1])); a(sm16(R.LB, R.SB[1]))
    a(sm32(R.OB, R.UV[1]+4, R.SB[1]+8)); a(sm16(R.LB, R.SB[1]+8))

def start_pipeline(a, first):
    T = R.T
    if first:
        for x in rdK(0, V_L16, 0): a(x)
    for x in rdK(1, R.A0, 0): a(x)
    for r in range(16): a(f"v_mov_b32 v{R.SB[1]+r}, 0")
    for r in range(8): a(f"v_mov_b32 v{R.UV[1]+r}, 0")
    if first:
        for r in range(32): a(f"v_mov_b32 v{R.OA+r}, 0")
        for r in range(8): a(f"v_mov_b32 v{R.LA+r}, 0")
        a("s_waitcnt lgkmcnt(2)")
        a(m32(R.SA[1], R.UK[0], R.QA, None)); a(m32(R.SB[0], R.UK[0], R.QB, None))
        a(m32(R.SA[1], R.UK[0]+4, R.QA+4, R.SA[1])); a(m32(R.SB[0], R.UK[0]+4, R.QB+4, R.SB[0]))
        a("s_nop 7"); a("s_nop 3")
        max_chain(a, T, [R.SA[1]+r for r in range(16)])
        max_chain(a, T+2, [R.SB[0]+r for r in range(16)])
        cross_half(a, "v_max_f32", T, T+1)
        cross_half(a, "v_max_f32", T+2, T+3)
        for r in range(16):
            a(f"v_sub_f32 v{R.NMA+r}, 0, v{T}"); a(f"v_sub_f32 v{R.NMB+r}, 0, v{T+2}")
    a("s_waitcnt lgkmcnt(0)")
    for x in rdK(0, R.A0, 1) + rdV(0, R.A0, 0): a(x)
    a(m32(R.SA[0], R.UK[1], R.QA, R.NMA)); a(m32(R.SA[0], R.UK[1]+4, R.QA+4, R.SA[0]))
    a("s_nop 7"); a("s_nop 3")

class B:
    Q = 160; KS = 168; VS = 176; KP = R.KP; VP = R.VP
    SS = 80; SP = 96; O = 112; L = 144; P = 148
def b_attention(a, npf):
    T = R.T; L = V_LANE
    a(f"s_lshl_b32 s{ST}, s{S_TG}, 1")
    a(f"s_add_u32 s{ST}, s{ST}, s{S_BR}")
    a(f"s_mul_i32 s{ST+1}, s{ST}, 6144")
    a(f"s_add_u32 s{ST+1}, s{ST+1}, {L_STASH}")
    a(f"v_add_u32 v{T}, s{ST+1}, v{V_L16}")
    for ks in range(2): a(f"ds_read_b128 {vr(B.Q+4*ks,4)}, v{T} offset:{ks*1024}")
    for ks in range(2): a(f"ds_read_b128 {vr(B.KS+4*ks,4)}, v{T} offset:{2048+ks*1024}")
    for s in range(2): a(f"ds_read_b128 {vr(B.VS+4*s,4)}, v{T} offset:{4096+s*1024}")
    a(f"s_cmp_eq_u32 s{S_HALO}, 1")
    a("s_cbranch_scc1 L_b_halo")
    a(f"s_and_b32 s{ST+2}, s{ST}, 3")
    a(f"s_cmp_eq_u32 s{ST+2}, 0")
    a(f"s_cselect_b32 s{ST+2}, 0, 6144")
    a(f"s_sub_u32 s{ST+1}, s{ST+1}, s{ST+2}")
    a(f"v_add_u32 v{T+1}, s{ST+1}, v{V_L16}")
    for ks in range(2): a(f"ds_read_b128 {vr(B.KP+4*ks,4)}, v{T+1} offset:{2048+ks*1024}")
    a(f"ds_read_b128 {vr(B.VP,4)}, v{T+1} offset:5120")
    a("s_branch L_b_ops")
    a.label("L_b_halo")
    a(f"s_waitcnt vmcnt({4 if D2_LATE else 8})")
    a.label("L_b_ops")
    if D2_LATE:
        for x in ring_dma(): a(x)
    a(f"v_and_b32 v{T}, 31, v{L}")
    a(f"v_lshrrev_b32 v{T+1}, 5, v{L}")
    a(f"v_lshlrev_b32 v{T+1}, 3, v{T+1}")
    a(f"v_sub_u32 v{T}, v{T}, v{T+1}")
    a(f"v_mov_b32 v{T+1}, 0xff800000")
    a(f"s_lshl_b32 s{ST+2}, s{S_NOPREV}, 10")
    a(f"v_add_u32 v{T+2}, s{ST+2}, v{T}")
    S0 = ST + 2
    for g0 in range(0, 16, 4):
        for r in range(g0, g0+4):
            c = 16*(r//8) + r % 8
            a(f"v_subrev_u32 v{B.SS+r}, {c}, v{T}")
        for k, r in enumerate(range(g0, g0+4)):
            a(f"v_cmp_le_u32_e64 s[{S0+2*k}:{S0+2*k+1}], 8, v{B.SS+r}")
        a("s_nop 0")
        for k, r in enumerate(range(g0, g0+4)):
            a(f"v_cndmask_b32_e64 v{B.SS+r}, 0, v{T+1}, s[{S0+2*k}:{S0+2*k+1}]")
    for g0 in (8, 12):
        for k, r in enumerate(range(g0, g0+4)):
            a(f"v_cmp_gt_i32_e64 s[{S0+2*k}:{S0+2*k+1}], v{T+2}, {r-17}")
        a("s_nop 0")
        for k, r in enumerate(range(g0, g0+4)):
            a(f"v_cndmask_b32_e64 v{B.SP+r}, 0, v{T+1}, s[{S0+2*k}:{S0+2*k+1}]")
    for r in range(8): a(f"v_mov_b32 v{B.SP+r}, 0")
    for r in range(16): a(f"v_mov_b32 v{B.O+r}, 0")
    for r in range(4): a(f"v_mov_b32 v{B.L+r}, 0")
    a("s_waitcnt lgkmcnt(0)")
    a(m32(B.SS, B.KS, B.Q, B.SS))
    a(m32(B.SP, B.KP, B.Q, B.SP))
    a(m32(B.SS, B.KS+4, B.Q+4, B.SS))
    a(m32(B.SP, B.KP+4, B.Q+4, B.SP))
    a("s_nop 7"); a("s_nop 3")
    regs = [B.SS+r for r in range(16)] + [B.SP+r for r in range(8, 16)]
    max_chain(a, T, regs)
    cross_half(a, "v_max_f32", T, T+1)
    for r in regs: a(f"v_sub_f32 v{r}, v{r}, v{T}")
    for r in regs: a(f"v_exp_f32 v{r}, v{r}")
    a("s_nop 1")
    a(sm32(B.O, B.VS, B.SS)); a(sm16(B.L, B.SS))
    a(sm32(B.O, B.VS+4, B.SS+8)); a(sm16(B.L, B.SS+8))
    a(sm32(B.O, B.VP, B.SP+8)); a(sm16(B.L, B.SP+8))
    a("s_nop 7")
    a(f"v_rcp_f32 v{T+2}, v{B.L}")
    a("s_nop 3")
    finish_store(a, B.O, T+2, B.P, S_OBD)

def finish_store(a, O, scale, P, soff):
    for r in range(16): a(f"v_mul_f32 v{O+r}, v{scale}, v{O+r}")
    for m in range(8): a(f"v_cvt_pk_bf16_f32 v{P+m}, v{O+2*m}, v{O+2*m+1}")
    for ks in range(2):
        a(f"buffer_store_dwordx4 {vr(P+4*ks,4)}, v{V_L16}, {SR(S_WS)}, s{soff} offen offset:{ks*1024} sc1")

def gen_fallback(a):
    T = R.T; W = SR(S_WS)
    M, L, AL, TM, TT = T+4, T+5, T+6, T+7, T+8
    S = R.SA[0]
    for r in range(16): a(f"v_mov_b32 v{R.OA+r}, 0")
    a(f"v_mov_b32 v{M}, 0xff800000")
    a(f"v_mov_b32 v{L}, 0")
    a(f"s_mov_b32 s{ST}, s{S_KVB}")
    a(f"s_mov_b32 s{ST+1}, 64")
    FK, FV, FQ_ = R.NMA, R.NMA + 8, (R.QA if O0_EARLY else R.KP)
    a.label("L_fb")
    for ks in range(2): a(f"buffer_load_dwordx4 {vr(FK+4*ks,4)}, v{V_L16}, {W}, s{ST} offen offset:{ks*1024} sc1")
    for s in range(2): a(f"buffer_load_dwordx4 {vr(FV+4*s,4)}, v{V_L16}, {W}, s{ST} offen offset:{2048+s*1024} sc1")
    a("s_waitcnt vmcnt(0)")
    a(m32(S, FK, FQ_, None)); a(m32(S, FK+4, FQ_+4, S))
    a("s_nop 7"); a("s_nop 3")
    max_chain(a, TM, [S+r for r in range(16)])
    cross_half(a, "v_max_f32", TM, TT)
    a(f"v_max_f32 v{TM}, v{TM}, v{M}")
    a(f"v_sub_f32 v{AL}, v{M}, v{TM}")
    a(f"v_exp_f32 v{AL}, v{AL}")
    a(f"v_mov_b32 v{M}, v{TM}")
    for r in range(16): a(f"v_sub_f32 v{S+r}, v{S+r}, v{M}")
    for r in range(16): a(f"v_exp_f32 v{S+r}, v{S+r}")
    a(f"v_mul_f32 v{L}, v{L}, v{AL}")
    for r in range(16):
        a(f"v_and_b32 v{TT}, 0xffff0000, v{S+r}")
        a(f"v_add_f32 v{L}, v{L}, v{TT}")
    for r in range(16): a(f"v_mul_f32 v{R.OA+r}, v{R.OA+r}, v{AL}")
    a("s_nop 1")
    a(sm32(R.OA, FV, S)); a(sm32(R.OA, FV+4, S+8))
    a(f"s_add_u32 s{ST}, s{ST}, 4096")
    a(f"s_sub_u32 s{ST+1}, s{ST+1}, 1")
    a(f"s_cmp_lg_u32 s{ST+1}, 0")
    a("s_nop 7"); a("s_nop 7")
    a("s_cbranch_scc1 L_fb")
    cross_half(a, "v_add_f32", L, TT)
    a(f"v_mov_b32 v{R.LA}, v{L}")

def gen_attention(a, late_hooks=None, pre_combine=None):
    T = R.T; W = SR(S_WS)
    late_hooks = late_hooks or {}
    a(f"s_lshl_b32 s{ST}, s{S_TG}, 1")
    a(f"s_add_u32 s{ST}, s{ST}, s{S_BR}")
    a(f"s_and_b32 s{ST+1}, s{ST}, 3")
    a(f"s_cmp_eq_u32 s{ST+1}, 0")
    a(f"s_cselect_b32 s{ST+1}, 1, 0")
    a(f"s_cmp_eq_u32 s{S_TB}, 0")
    a(f"s_cselect_b32 s{S_NOPREV}, s{ST+1}, 0")
    a(f"s_cselect_b32 s{S_HALO}, 0, s{ST+1}")
    start_pipeline(a, True)
    npf = 0
    if F1_MID:
        a(f"s_lshl_b32 s{ST+2}, s{S_H}, 11")
        a(f"s_add_u32 s{ST+2}, s{ST+2}, 0x{WS_F1:x}")
        a(f"s_lshl_b32 s{ST+3}, s{S_TB}, 8")
        a(f"s_add_u32 s{ST+3}, s{ST+3}, s{ST+2}")
        a("s_waitcnt vmcnt(0)")
        a("s_barrier")
        flag_store(a, ST+3, 'f1')
    stamp(a, 'pipe')
    def h0(a):
        a(f"s_lshl_b32 s{ST+2}, s{S_H}, 11")
        a(f"s_add_u32 s{ST+2}, s{ST+2}, 0x{WS_F1:x}")
        a(f"s_lshl_b32 s{ST+3}, s{S_TB}, 8")
        a(f"s_add_u32 s{ST+3}, s{ST+3}, s{ST+2}")
        if not F1_EARLY:
            stamp(a, 'h0a')
            a("s_waitcnt vmcnt(0)")
            a("s_barrier")
            flag_store(a, ST+3, 'f1')
        stamp(a, 'h0b')
        if F1_AT == 1: hp(a)
    def hp(a):
        a(f"buffer_load_dword v{R.PL}, v{R.PV_}, {W}, s{ST+2} offen sc1")
    def h1(a):
        stamp(a, 'h1a')
        spin_poll(a, R.PL, R.PV_, S_WS, ST+2, 'f1', first=0)
        stamp(a, 'h1b')
        a(f"s_cmp_eq_u32 s{S_HALO}, 0")
        a("s_cbranch_scc1 L_nohalo_ld")
        a(f"s_lshl_b32 s{ST+3}, s{S_H}, 3")
        a(f"s_add_u32 s{ST+3}, s{ST+3}, s{S_TB}")
        a(f"s_sub_u32 s{ST+3}, s{ST+3}, 1")
        a(f"s_lshl_b32 s{ST+3}, s{ST+3}, 1")
        a(f"s_lshr_b32 s{ST+4}, s{S_TG}, 1")
        a(f"s_add_u32 s{ST+3}, s{ST+3}, s{ST+4}")
        a(f"s_lshl_b32 s{ST+3}, s{ST+3}, 12")
        a(f"s_add_u32 s{ST+3}, s{ST+3}, 0x{WS_HALO:x}")
        for ks in range(2): a(f"buffer_load_dwordx4 {vr(R.KP+4*ks,4)}, v{V_L16}, {W}, s{ST+3} offen offset:{ks*1024} sc1")
        a(f"buffer_load_dwordx4 {vr(R.VP,4)}, v{V_L16}, {W}, s{ST+3} offen offset:2048 sc1")
        a.label("L_nohalo_ld")
        for x in ring_dma() + ([] if D2_LATE else ring_dma()): a(x)
    block_body(a, 'first', {0: h0, F1_AT: h1} if F1_AT == 1 else {0: h0, F1_AT - 1: hp, F1_AT: h1})
    tail(a)
    stamp(a, 'blk0')
    b_attention(a, npf)
    stamp(a, 'battn')
    if not O0_EARLY:
        for r in range(8): a(f"v_mov_b32 v{R.KP+r}, v{R.QA+r}")
    a(f"v_mov_b32 v{R.A0}, v{R.A1}")
    a(f"v_add_u32 v{R.A1}, 65536, v{R.LB16}")
    a(f"s_mov_b32 s{S_RING}, 65536")
    a(f"s_waitcnt vmcnt({6+npf})")
    a("s_barrier")
    stamp(a, 'restart')
    start_pipeline(a, False)
    late = late_hooks
    ring = (lambda: []) if NO_RING else ring_dma
    block_body(a, 'loop', {'bar': late.get('f2')}, {0: late['wo'](0)[:2], 1: late['wo'](0)[2:], 2: ring(), 3: late['wo'](1)}, barvm=len(late['wo'](0)))
    next_block(a)
    a(f"s_mov_b32 s{S_N}, 4")
    a.label("L_at_loop")
    stamp(a, 'it')
    rg = ring()
    block_body(a, 'loop', None, {2: rg[:2], 3: rg[2:]} if RING_SPLIT else {2: rg})
    next_block(a)
    a(f"s_sub_u32 s{S_N}, s{S_N}, 1")
    a(f"s_cmp_lg_u32 s{S_N}, 0")
    a("s_cbranch_scc1 L_at_loop")
    pf = late['pf']() if 'pf' in late else []
    if O0_EARLY and 'o0' in late:
        o0 = late['o0']()
        if O0_MODE == 0:
            block_body(a, 'loop', {'bar': late['poll2']}, {0: pf, 3: late['wo'](2)}, barvm=len(pf))
            late['chk2'](a, 4)
            next_block(a)
            block_body(a, 'last', None, {0: o0[0:2], 1: o0[2:4], 2: o0[4:6], 3: o0[6:]})
        else:
            late['poll2'](a)
            wo2 = late['wo'](2)
            f6, f7 = O0_PLAN(o0, wo2)
            f6[0] = pf + f6.get(0, [])
            block_body(a, 'loop', {'bar': lambda a: late['chk2'](a, 63)}, f6, barvm=len(pf))
            next_block(a)
            block_body(a, 'last', None, f7)
    else:
        block_body(a, 'loop', None, {0: pf, 3: late['wo'](2)}, barvm=len(pf))
        next_block(a)
        block_body(a, 'last', {0: late['poll2']} if 'poll2' in late else None)
    tail(a)
    stamp(a, 'loopend')
    if pre_combine: pre_combine(a)
    stamp(a, 'f2ok')
    a(f"v_add_u32 v{T}, s{S_M0R}, v{V_L16}")
    a(f"s_xor_b32 s{ST}, s{S_M0R}, 16384")
    a(f"v_add_u32 v{T+1}, s{ST}, v{V_L16}")
    a("s_nop 7"); a("s_nop 3")
    for q in range(4): a(f"ds_write_b128 v{T}, {vr(R.OB+4*q,4)} offset:{q*1024}")
    a(f"ds_write_b128 v{T}, {vr(R.LB,4)} offset:32768")
    a("s_waitcnt lgkmcnt(0)")
    a("s_barrier")
    for q in range(4): a(f"ds_read_b128 {vr(R.SA[0]+4*q,4)}, v{T+1} offset:{q*1024}")
    a(f"ds_read_b128 {vr(R.NMB,4)}, v{T+1} offset:32768")
    a("s_waitcnt lgkmcnt(0)")
    for r in range(16): a(f"v_add_f32 v{R.OA+r}, v{R.OA+r}, v{R.SA[0]+r}")
    a(f"v_add_f32 v{R.LA}, v{R.LA}, v{R.NMB}")
    a(f"v_mov_b32 v{T+2}, 0")
    for r in range(16): a(f"v_fma_f32 v{T+2}, v{R.OA+r}, 0, v{T+2}")
    a(f"v_add_f32 v{T+2}, v{T+2}, v{R.LA}")
    a(f"s_mov_b32 s{ST}, 0x{f2u(2.0**40 if not FORCE_FALLBACK else -1.0):x}")
    a(f"v_cmp_nlt_f32 vcc, v{T+2}, s{ST}")
    a("s_nop 4")
    a("s_cbranch_vccz L_at_fin")
    gen_fallback(a)
    a.label("L_at_fin")
    stamp(a, 'comb')
    a(f"v_rcp_f32 v{T+3}, v{R.LA}")
    a("s_nop 0")
    finish_store(a, R.OA, T+3, R.NMA, S_OAD)

S2_T, S2_NT, S2_OBB, S2_OBA, S2_WB, S2_M0, S2_F2P, S2_F3P, S2_F2F, S2_F3F, S2_GOF, S2_OUT, S2_ROT = 32, 33, 34, 35, 38, 39, 40, 41, 44, 45, 48, 49, 50
ROTATE = True
G2_FINE = True
def rot_off(s, shift, base, dst):
    return (f"s_add_u32 s{dst}, s{S2_ROT}, {s%4}\ns_and_b32 s{dst}, s{dst}, 3\ns_lshl_b32 s{dst}, s{dst}, {shift}\n"
            f"s_add_u32 s{dst}, s{dst}, s{base}")
S_WOB, S_WOA, S_OUT = S_A, S_B, S_C
class H:
    DV = 224
    RA = 228; OV = 229; PFV = 230; GT = 231; PD = 232; FP = 233; FQ = 234
    ACCB = 0; ACCA = 32; WF = 192
REG = [98304, 131072, 65536, 32768, 0, 98304, 131072, 65536]
O1_EARLY = True
def ofs(s): return [96, 160, 128, 64][s % 4] if O1_EARLY else 64 + 32*((s + 1) % 4)
F3_AT = 1
POLL_EARLY = True

def g2_setup_v(a, T):
    L = V_LANE
    a(f"s_and_b32 s{ST}, s2, 7")
    a(f"s_lshr_b32 s{ST+1}, s2, 3")
    a(f"s_lshr_b32 s{ST+2}, s{ST}, 1")
    a(f"s_lshl_b32 s{ST+2}, s{ST+2}, 2")
    a(f"s_and_b32 s{ST+3}, s{ST+1}, 3")
    a(f"s_add_u32 s{ST+2}, s{ST+2}, s{ST+3}")
    a(f"s_and_b32 s{ST+3}, s{ST}, 1")
    a(f"s_lshl_b32 s{ST+3}, s{ST+3}, 3")
    a(f"s_lshr_b32 s{ST+4}, s{ST+1}, 2")
    a(f"s_add_u32 s{S2_NT}, s{ST+3}, s{ST+4}")
    a(f"s_lshl_b32 s{S2_T}, s{ST+2}, 2")
    a(f"s_add_u32 s{S2_T}, s{S2_T}, s{S_TG}")
    a(f"s_lshl_b32 s{ST+3}, s{S2_T}, 6")
    a(f"s_lshl_b32 s{ST+4}, s{S_BR}, 4")
    a(f"s_add_u32 s{ST+3}, s{ST+3}, s{ST+4}")
    a(f"s_lshl_b32 s{ST+3}, s{ST+3}, 11")
    a(f"s_add_u32 s{S2_OBA}, s{ST+3}, 0x{WS_O:x}")
    a(f"s_add_u32 s{S2_OBB}, s{S2_OBA}, {32*2048}")
    a(f"s_lshl_b32 s{ST+3}, s{S_BR}, 9")
    a(f"s_lshl_b32 s{ST+4}, s{S_TG}, 5")
    a(f"s_add_u32 s{ST+3}, s{ST+3}, s{ST+4}")
    a(f"s_lshl_b32 s{S2_WB}, s{ST+3}, 11")
    a(f"s_lshl_b32 s{ST+3}, s{S_BR}, 14")
    a(f"s_lshl_b32 s{ST+4}, s{S_TG}, 11")
    a(f"s_add_u32 s{S2_M0}, s{ST+3}, s{ST+4}")
    a(f"s_lshl_b32 s{ST+3}, s{S2_T}, 7")
    a(f"s_add_u32 s{S2_GOF}, s{ST+3}, 0x{WS_G:x}")
    a(f"s_lshr_b32 s{ST+3}, s{ST+2}, 1")
    a(f"s_lshl_b32 s{ST+3}, s{ST+3}, 13")
    a(f"s_add_u32 s{S2_F2P}, s{ST+3}, 0x{WS_F2:x}")
    a(f"s_add_u32 s{S2_F3P}, s{ST+3}, 0x{WS_F3:x}")
    a(f"s_lshl_b32 s{ST+3}, s{S_TB}, 5")
    a(f"s_add_u32 s{ST+3}, s{ST+3}, s{S_H}")
    a(f"s_lshl_b32 s{ST+3}, s{ST+3}, 8")
    a(f"s_add_u32 s{S2_F2F}, s{ST+3}, 0x{WS_F2:x}")
    a(f"s_add_u32 s{S2_F3F}, s{ST+3}, 0x{WS_F3:x}")
    a(f"s_lshr_b32 s{ST+3}, s{ST+2}, 1")
    a(f"s_lshl_b32 s{ST+3}, s{ST+3}, 8")
    a(f"s_and_b32 s{ST+4}, s{ST+2}, 1")
    a(f"s_add_u32 s{ST+3}, s{ST+3}, s{ST+4}")
    a(f"s_lshl_b32 s{ST+4}, s{S_TG}, 6")
    a(f"s_add_u32 s{ST+3}, s{ST+3}, s{ST+4}")
    a(f"s_lshl_b32 s{ST+3}, s{ST+3}, 11")
    a(f"s_lshl_b32 s{ST+4}, s{S2_NT}, 7")
    a(f"s_add_u32 s{ST+3}, s{ST+3}, s{ST+4}")
    a(f"s_lshl_b32 s{ST+4}, s{S_BR}, 6")
    a(f"s_add_u32 s{S2_OUT}, s{ST+3}, s{ST+4}")
    a(f"v_lshrrev_b32 v{T}, 2, v{L}")
    a(f"v_lshlrev_b32 v{T}, 11, v{T}")
    a(f"v_and_b32 v{T+1}, 3, v{L}")
    a(f"v_lshlrev_b32 v{T+1}, 4, v{T+1}")
    a(f"s_lshl_b32 s{ST+3}, s{S2_NT}, 7")
    a(f"v_add3_u32 v{H.DV}, v{T}, v{T+1}, s{ST+3}")
    a(f"v_add_u32 v{H.DV+1}, 32768, v{H.DV}")
    a(f"v_add_u32 v{H.DV+2}, 64, v{H.DV}")
    a(f"v_add_u32 v{H.DV+3}, {32768+64}, v{H.DV}")
    a(f"v_lshrrev_b32 v{T}, 5, v{L}")
    a(f"v_lshlrev_b32 v{T}, 8, v{T}")
    a(f"v_bfe_u32 v{T+1}, v{L}, 2, 2")
    a(f"v_lshlrev_b32 v{T+1}, 6, v{T+1}")
    a(f"v_bfe_u32 v{T+2}, v{L}, 4, 1")
    a(f"v_lshlrev_b32 v{T+2}, 5, v{T+2}")
    a(f"v_add3_u32 v{T}, v{T}, v{T+1}, v{T+2}")
    a(f"v_and_b32 v{T+1}, 3, v{L}")
    a(f"v_lshlrev_b32 v{T+1}, 3, v{T+1}")
    a(f"s_mul_i32 s{ST+3}, s{S_BR}, {16384+8192}")
    a(f"v_add3_u32 v{H.RA}, v{T}, v{T+1}, s{ST+3}")
    a(f"v_and_b32 v{H.OV}, 31, v{L}")
    a(f"v_lshlrev_b32 v{H.FP}, 2, v{H.OV}")
    a(f"v_lshlrev_b32 v{H.FQ}, 8, v{H.OV}")
    a(f"s_lshr_b32 s{S2_ROT}, s{ST+1}, 2")
    a(f"s_and_b32 s{S2_ROT}, s{S2_ROT}, {3 if ROTATE else 0}")
    a(f"v_lshlrev_b32 v{H.OV}, 12, v{H.OV}")
    a(f"v_lshrrev_b32 v{T}, 5, v{L}")
    a(f"v_lshlrev_b32 v{T}, 4, v{T}")
    a(f"v_add_u32 v{H.OV}, v{H.OV}, v{T}")
    a(f"s_and_b32 s{ST+3}, s{ST+1}, 15")
    a(f"s_lshl_b32 s{ST+3}, s{ST+3}, 6")
    a(f"s_lshl_b32 s{ST+4}, s{S_WV}, 3")
    a(f"s_add_u32 s{ST+3}, s{ST+3}, s{ST+4}")
    a(f"v_lshrrev_b32 v{T}, 3, v{L}")
    a(f"v_add_u32 v{T}, s{ST+3}, v{T}")
    a(f"v_lshlrev_b32 v{T}, 11, v{T}")
    a(f"v_and_b32 v{T+1}, 7, v{L}")
    a(f"v_lshlrev_b32 v{T+1}, 7, v{T+1}")
    a(f"s_and_b32 s{ST+3}, s{ST}, 1")
    a(f"s_lshl_b32 s{ST+3}, s{ST+3}, 10")
    a(f"v_add3_u32 v{H.PFV}, v{T}, v{T+1}, s{ST+3}")

def g2_srds(a):
    srd(a, S_WOB, P_WOB, 1024*2048)
    srd(a, S_WOA, P_WOA, 1024*2048)
    srd(a, S_OUT, P_OUT, 2048*2048)

def wo_dma(s):
    sr_ = S_WOB if s < 4 else S_WOA
    out = []
    for b in range(2):
        for hf in range(2):
            pre = rot_off(s, 18, S2_WB, ST+1) + "\n" if (b, hf) == (0, 0) else ""
            out.append(pre + f"s_add_u32 m0, s{S2_M0}, {REG[s] + b*8192 + hf*1024}\ns_nop 0\n"
                       f"buffer_load_dwordx4 v{H.DV+2*b+hf}, {SR(sr_)}, s{ST+1} offen lds")
    return out

def wo_prefetch():
    if NO_PF: return []
    return [f"s_lshr_b32 s{ST+4}, s2, 7\n"
            f"s_cmp_eq_u32 s{ST+4}, 0\n"
            f"s_cselect_b32 s{ST+4}, s{S_WOB}, s{S_WOA}\n"
            f"s_cselect_b32 s{ST+5}, s{S_WOB+1}, s{S_WOA+1}\n"
            f"s_mov_b32 s{ST+6}, s{S_WOB+2}\n"
            f"s_mov_b32 s{ST+7}, s{S_WOB+3}\n"
            f"buffer_load_dword v{H.PD}, v{H.PFV}, {SR(ST+4)}, 0 offen"]

G2_PRE = [('w', 3)]
G2_SCHED = {0: [('o', 2), ('w', 4)], 1: [('o', 3), 'poll'], 2: ['chk', ('o', 4), ('w', 5)], 3: [('o', 5), ('w', 6)], 4: [('o', 6), ('w', 7)], 5: [('o', 7)]}
O0_REGS = [236, 240, 244, 248, 208, 212, 216]
def ofr(s, f):
    if O0_EARLY and s == 0 and f < len(O0_REGS): return O0_REGS[f]
    return ofs(s) + f*4
def o0_early():
    W = SR(S_WS); out = []
    for f in range(len(O0_REGS)):
        pre = rot_off(0, 13, S2_OBB, ST+9) + "\n" if f == 0 else (f"s_add_u32 s{ST+9}, s{ST+9}, 4096\n" if f == 4 else "")
        out.append(pre + f"buffer_load_dwordx4 {vr(O0_REGS[f], 4)}, v{V_L16}, {W}, s{ST+9} offen offset:{(f%4)*1024} sc1")
    out.append(f"buffer_load_dword v{H.GT}, v{H.FP}, {W}, s{S2_GOF} offen sc1")
    return out
def o_loads(s):
    W = SR(S_WS); base = S2_OBB if s < 4 else S2_OBA
    out = []
    for f in range(8):
        pre = rot_off(s, 13, base, ST+1) + "\n" if f == 0 else (f"s_add_u32 s{ST+1}, s{ST+1}, 4096\n" if f == 4 else "")
        out.append(pre + f"buffer_load_dwordx4 {vr(ofs(s) + f*4, 4)}, v{V_L16}, {W}, s{ST+1} offen offset:{(f%4)*1024} sc1")
    return out
def gen_gemm2(a, q):
    T = R.T; W = SR(S_WS)
    def items(it):
        if it == 'poll': return [('poll', f"buffer_load_dword v{R.PL}, v{H.FQ}, {W}, s{S2_F3P} offen sc1")]
        kind, s = it
        if kind == 'w': return [(it, x) for x in wo_dma(s)]
        base = S2_OBB if s < 4 else S2_OBA
        out = []
        if O0_EARLY and s == 0:
            return [(it, f"buffer_load_dwordx4 {vr(ofr(0, f), 4)}, v{V_L16}, {W}, s{ST+9} offen offset:{(f%4)*1024} sc1") for f in range(len(O0_REGS), 8)]
        return [(it, x) for x in o_loads(s)]
    def emit(l):
        for tag, x in l: a(x); q.issue(tag)
    emit(items(('o', 0)))
    stamp(a, 'g2a')
    a(f"s_waitcnt vmcnt({q.wait('st')})")
    stamp(a, 'stdone')
    a("s_barrier")
    flag_store(a, S2_F3F, 'f3')
    stamp(a, 'gb0')
    for it in G2_PRE: emit(items(it))
    def reads(s, f, buf):
        hh, ks = f // 2, f % 2
        out = []
        for blk in range(2):
            for tt in range(2):
                off = (32*hh + 16*ks + 8*tt)*64
                out.append(f"ds_read_b64_tr_b16 {vr(H.WF + buf*8 + blk*4 + 2*tt, 2)}, v{RAREG[blk]} offset:{off}")
        return out
    RAREG = [222, 223]
    a(f"v_add_u32 v{RAREG[0]}, {REG[0]}, v{H.RA}")
    a(f"v_xor_b32 v{RAREG[1]}, 8192, v{H.RA}")
    a(f"v_add_u32 v{RAREG[1]}, {REG[0]}, v{RAREG[1]}")
    for x in reads(0, 0, 0): a(x)
    if not O0_EARLY: a(f"s_waitcnt vmcnt({q.wait(('o', 0))})")
    for s in range(8):
        acc_ = H.ACCB if s < 4 else H.ACCA
        todo = []
        for it in G2_SCHED.get(s, []):
            if it == 'chk':
                n = q.wait('poll') if 'poll' in q.q else 63
                spin_poll(a, R.PL, H.FQ, S_WS, S2_F3P, 'f3', first=min(n, 63))
                stamp(a, 'f3ok')
            else: todo += items(it)
        for f in range(8):
            buf = f % 2
            if f == 7 and s < 7:
                n = 63
                for tag in (('o', s), ('o', s+1), ('w', s+1)):
                    if tag in q.q: n = min(n, q.wait(tag))
                a(f"s_waitcnt vmcnt({n}) lgkmcnt(0)" if n < 63 else "s_waitcnt lgkmcnt(0)")
                a("s_barrier")
                d = (REG[s+1] - REG[s]) & 0xffffffff
                a(f"v_add_u32 v{RAREG[0]}, 0x{d:x}, v{RAREG[0]}")
                a(f"v_add_u32 v{RAREG[1]}, 0x{d:x}, v{RAREG[1]}")
                nxt = reads(s+1, 0, buf^1)
                fine = False
            else:
                fine = G2_FINE
                a("s_waitcnt lgkmcnt(2)" if fine else "s_waitcnt lgkmcnt(0)")
                nxt = reads(s, f+1, buf^1) if f < 7 else []
            of = ofr(s, f)
            first = (s % 4 == 0 and f == 0)
            m = [m32(acc_+16*blk, H.WF + buf*8 + blk*4, of, None if first else acc_+16*blk) for blk in range(2)]
            if nxt: a(nxt[0]); a(nxt[1])
            a(m[0])
            if fine: a("s_waitcnt lgkmcnt(2)" if nxt else "s_waitcnt lgkmcnt(0)")
            if nxt: a(nxt[2]); a(nxt[3])
            a(m[1])
            k = (len(todo) + (7 - f) - 1) // (7 - f) if f < 7 else len(todo)
            emit(todo[:k]); todo = todo[k:]
        stamp(a, f'st{s}')
    stamp(a, 'g2end')
    a(f"s_lshl_b32 s{ST}, s{S_WV}, 12")
    a(f"v_add_u32 v{T}, s{ST}, v{V_L16}")
    a(f"s_xor_b32 s{ST}, s{ST}, 16384")
    a(f"v_add_u32 v{T+1}, s{ST}, v{V_L16}")
    a(f"v_sub_f32 v{T+2}, 1.0, v{H.GT}")
    a("s_nop 7")
    for r in range(32): a(f"v_mul_f32 v{H.ACCB+r}, v{T+2}, v{H.ACCB+r}")
    for r in range(32): a(f"v_fma_f32 v{H.ACCB+r}, v{H.GT}, v{H.ACCA+r}, v{H.ACCB+r}")
    for qq in range(4): a(f"ds_write_b128 v{T}, {vr(H.ACCB+16+4*qq,4)} offset:{qq*1024}")
    a("s_waitcnt lgkmcnt(0)")
    a("s_barrier")
    X = 64
    for qq in range(4): a(f"ds_read_b128 {vr(X+4*qq,4)}, v{T+1} offset:{qq*1024}")
    a("s_waitcnt lgkmcnt(0)")
    for r in range(16): a(f"v_add_f32 v{H.ACCB+r}, v{H.ACCB+r}, v{X+r}")
    P = X + 16
    for m in range(8): a(f"v_cvt_pk_bf16_f32 v{P+m}, v{H.ACCB+2*m}, v{H.ACCB+2*m+1}")
    a("s_nop 1")
    a(f"v_permlane32_swap_b32 v{P}, v{P+2}")
    a(f"v_permlane32_swap_b32 v{P+1}, v{P+3}")
    a(f"v_permlane32_swap_b32 v{P+4}, v{P+6}")
    a(f"v_permlane32_swap_b32 v{P+5}, v{P+7}")
    a("s_nop 1")
    for qq in range(2):
        a(f"buffer_store_dwordx4 {vr(P+4*qq,4)}, v{H.OV}, {SR(S_OUT)}, s{S2_OUT} offen offset:{32*qq}")

def gen_fused(kname, upto=3):
    a = Asm()
    gen_prologue(a, kname)
    gen_gemm1(a)
    gen_transition(a)
    q = VMQ()
    W = SR(S_WS)
    def poll2(a):
        if NO_POLL2: return
        a(f"buffer_load_dword v{R.PL}, v{H.FQ}, {W}, s{S2_F2P} offen sc1")
    def pre_combine(a):
        if O0_EARLY:
            if O1_EARLY:
                for x in o_loads(1): a(x); q.issue(('o', 1))
            return
        spin_poll(a, R.PL, H.FQ, S_WS, S2_F2P, 'f2')
        a(f"buffer_load_dword v{H.GT}, v{H.FP}, {W}, s{S2_GOF} offen sc1"); q.issue('g')
    def chk2(a, n): spin_poll(a, R.PL, H.FQ, S_WS, S2_F2P, 'f2', first=n)
    f2 = lambda a: flag_store(a, S2_F2F, 'f2')
    if upto >= 3:
        gen_attention(a, {'f2': f2, 'poll2': poll2, 'pf': wo_prefetch, 'wo': (lambda s: [] if NO_WO else wo_dma(s)),
                          'chk2': chk2, 'o0': o0_early}, pre_combine)
        q.issue('st', 2)
        gen_gemm2(a, q)
    else:
        gen_attention(a, {'f2': f2, 'wo': lambda s: []})
    if STAMPS:
        a("s_waitcnt vmcnt(0)")
        stamp_flush(a, R.T + 4)
    a.label("L_end")
    a("s_endpgm")
    return a
```
